```python
import torch

def _softmax(x, axis=-1):
    return torch.softmax(x, dim=axis)
def _gelu(x):
    return torch.nn.functional.gelu(x, approximate="tanh")
def _silu(x):
    return torch.nn.functional.silu(x)
def _sigmoid(x):
    return torch.sigmoid(x)
def _layernorm(x, axis=-1, eps=1e-5):
    m = x.mean(dim=axis, keepdim=True)
    v = x.var(dim=axis, keepdim=True, unbiased=False)
    return (x - m) / torch.sqrt(v + eps)
def _scatter_add(tgt, idx, src, axis=0):
    return tgt.clone().index_add_(axis, idx, src)
def _segment_sum(src, seg, n):
    out = torch.zeros((n,) + src.shape[1:], dtype=src.dtype)
    return out.index_add_(0, seg, src)
def _pad(x, pw):
    flat = tuple(v for pair in reversed(pw) for v in pair)
    return torch.nn.functional.pad(x, flat)

kernel_name = 'recurrent_scan__softmax_full_mha__mixer_channel_mlp__prompt'

def setup_inputs():

    _w = (lambda a: (lambda t: t.to(torch.bfloat16) if t.is_floating_point() else t)(torch.as_tensor(a)))
    def _A_setup():
        B, S, D = 1, 2048, 640
        return {
            "x": _w((lambda *s: torch.randn(*s, dtype=torch.bfloat16) * 0.05)(B, S, D)),
            "wqkv": _w((lambda *s: torch.randn(*s, dtype=torch.bfloat16) * 0.05)(D, 3 * D)),
            "wo": _w((lambda *s: torch.randn(*s, dtype=torch.bfloat16) * 0.05)(D, D)),
        }
    _A_in = _A_setup()

    def _B_setup():
        B, S, D, F = 1, 2048, 640, 1536
        return {
            "x": _w((lambda *s: torch.randn(*s, dtype=torch.bfloat16) * 0.05)(B, S, D)),
            "w1": _w((lambda *s: torch.randn(*s, dtype=torch.bfloat16) * 1.6)(D, F) * (D ** -0.5)),
            "b1": _w((lambda *s: torch.randn(*s, dtype=torch.bfloat16) * 0.8)(F)),
            "w2": _w((lambda *s: torch.randn(*s, dtype=torch.bfloat16) * 0.05)(F, D) * (F ** -0.5)),
            "b2": _w((lambda *s: torch.randn(*s, dtype=torch.bfloat16) * 0.05)(D)),
        }
    _B_in = _B_setup()

    return {
        "A_x": _A_in["x"],
        "A_wqkv": _A_in["wqkv"],
        "A_wo": _A_in["wo"],
        "B_x": _B_in["x"],
        "B_w1": _B_in["w1"],
        "B_b1": _B_in["b1"],
        "B_w2": _B_in["w2"],
        "B_b2": _B_in["b2"],
    }

def reference(A_x, A_wqkv, A_wo, B_x, B_w1, B_b1, B_w2, B_b2):
    def _A_ref(x, wqkv, wo):
        B, S, D = x.shape
        H = 32; Dh = D // H
        qkv = (lambda x, *d: x.permute(*d))((x @ wqkv).reshape(B, S, 3, H, Dh), 2, 0, 3, 1, 4)
        q, k, v = qkv[0], qkv[1], qkv[2]
        scale = Dh ** -0.5
        scores = torch.einsum("bhqd,bhkd->bhqk", q, k) * scale
        p = _softmax(scores, axis=-1)
        o = torch.einsum("bhqk,bhkd->bhqd", p, v)
        return (lambda x, *d: x.permute(*d))(o, 0, 2, 1, 3).reshape(B, S, D) @ wo

    def _B_ref(x, w1, b1, w2, b2):
        y = _layernorm(x, axis=-1)
        h = _gelu(torch.einsum("bsd,df->bsf", y, w1) + b1)
        return torch.einsum("bsf,fd->bsd", h, w2) + b2

    x = A_x
    xn = _layernorm(x, axis=-1)
    s = _A_ref(xn, A_wqkv, A_wo)
    g = _silu(_B_ref(xn, B_w1, B_b1, B_w2, B_b2))
    return x + s * g
```

```python
from genlib import *

def gen_attn(a, name="attn_kernel", stamps=False):
    kernel_header(a, name)
    vK1o, vK2o, vVo, vT0, vT1, vT2, vLane = 1, 2, 3, 4, 5, 6, 7
    Q1 = [8 + 6*i for i in range(4)]
    Q2 = [12 + 6*i for i in range(4)]
    O = [32 + 16*i for i in range(4)]
    Sb = [96, 112]
    KV = [128, 142]
    vM = [156, 157, 158, 159]
    NV = 160
    def K1(s): return KV[s]
    def K2(s): return KV[s] + 4
    def V1(s): return KV[s] + 6
    def V2(s): return KV[s] + 10
    sWS = 4
    sHead, sQb, sWave, sQg, sKq = 8, 9, 10, 11, 12
    sKoff, sVoff, sCnt, sNmax, sT, sKbase, sVbase = 13, 14, 15, 16, 17, 18, 19
    sHi = 20
    sMsk = 22

    a("s_cmp_ge_u32 s2, 256")
    a(f"s_cbranch_scc1 {name}_end")
    a(f"s_load_dwordx2 s[24:25], s[0:1], {KA['ws']}")
    if stamps: a("s_memtime s[40:41]\ns_memrealtime s[48:49]")
    a("v_lshrrev_b32 v4, 6, v0")
    a(f"v_and_b32 v{vLane}, 63, v0")
    a("s_and_b32 s26, s2, 7")
    a("v_readfirstlane_b32 s10, v4")
    a("s_lshr_b32 s27, s2, 3")
    a("s_and_b32 s28, s27, 3")
    a("s_lshl_b32 s26, s26, 2")
    a(f"s_add_u32 s{sHead}, s26, s28")
    a(f"s_lshr_b32 s{sQb}, s27, 2")
    a(f"s_and_b32 s{sQg}, s{sWave}, 1")
    a(f"s_lshr_b32 s{sKq}, s{sWave}, 1")
    a(f"s_mov_b32 s{sHi}, 0")
    a(f"s_mov_b32 s{sHi+1}, -1")
    a("s_mov_b32 s32, -1")
    a("s_mov_b32 s33, 0")
    a("s_mov_b32 s34, 0x33ffff")
    a("s_mov_b32 s35, 0x33ffff")
    a("s_mov_b32 s36, 0x440000")
    a("s_mov_b32 s37, 0x440000")
    a("s_waitcnt lgkmcnt(0)")
    make_srd(a, sWS, 24, WS_BYTES)
    a(f"v_and_b32 v{vT0}, 31, v{vLane}")
    a(f"v_lshrrev_b32 v{vT1}, 5, v{vLane}")
    a(f"v_lshlrev_b32 v{vK2o}, 3, v{vT0}")
    a(f"v_lshl_add_u32 v{vK1o}, v{vT1}, 9, v{vK2o}")
    a(f"v_lshlrev_b32 v{vVo}, 4, v{vLane}")
    a(f"s_mul_i32 s26, s{sHead}, 81920")
    a(f"s_lshl_b32 s27, s{sQb}, 1")
    a(f"s_add_u32 s27, s27, s{sQg}")
    a("s_mul_i32 s27, s27, 5120")
    a("s_add_u32 s27, s27, s26")
    a("s_add_u32 s28, s27, 2560")
    for i in range(4):
        sb_, off = ("s27", 1280*i) if i < 2 else ("s28", 1280*(i-2))
        a(f"buffer_load_dwordx2 {vr(Q1[i],2)}, v{vK1o}, s[4:7], {sb_} offen offset:{off}")
        a(f"buffer_load_dwordx2 {vr(Q1[i]+2,2)}, v{vK1o}, s[4:7], {sb_} offen offset:{off+256}")
        a(f"buffer_load_dwordx2 {vr(Q2[i],2)}, v{vK2o}, s[4:7], {sb_} offen offset:{off+1024}")
    for st in range(2):
        a(f"v_mov_b32 v{K2(st)}, 0x3f803f80")
        a(f"v_mov_b32 v{K2(st)+1}, 0x3f80")
        for r in range(8):
            a(f"v_mov_b32 v{V1(st)+r}, 0")
    a("s_mov_b64 exec, s[36:37]")
    for st in range(2):
        for r in range(8):
            a(f"v_mov_b32 v{V1(st)+r}, 0x3f803f80")
    a("s_mov_b64 exec, -1")
    a(f"s_mul_i32 s29, s{sKq}, 20480")
    a("s_add_u32 s29, s29, s26")
    a(f"s_add_u32 s{sKbase}, s29, {OFF_K}")
    a(f"s_lshl_b32 s29, s{sHead}, 17")
    a(f"s_lshl_b32 s30, s{sKq}, 15")
    a("s_add_u32 s29, s29, s30")
    a(f"s_add_u32 s{sVbase}, s29, {OFF_V}")
    a(f"s_mov_b32 s{sNmax}, 1")
    a("s_waitcnt vmcnt(0)")
    a.label(f"{name}_maxpass")
    a(f"s_mov_b64 exec, s[{sHi}:{sHi+1}]")
    for i in range(4):
        a(f"v_mov_b32 v{Q2[i]}, 0")
        a(f"v_mov_b32 v{Q2[i]+1}, 0")
    a("s_mov_b64 exec, -1")
    for i in range(4):
        a(f"v_mov_b32 v{vM[i]}, 0xff800000")
    a(f"s_mov_b32 s{sKoff}, s{sKbase}")
    a(f"s_mov_b32 s{sCnt}, 0")
    a.label(f"{name}_maxloop")
    a(f"buffer_load_dwordx2 {vr(K1(0),2)}, v{vK1o}, s[4:7], s{sKoff} offen")
    a(f"buffer_load_dwordx2 {vr(K1(0)+2,2)}, v{vK1o}, s[4:7], s{sKoff} offen offset:256")
    a("s_mov_b64 exec, s[32:33]")
    a(f"buffer_load_dwordx2 {vr(K2(0),2)}, v{vK2o}, s[4:7], s{sKoff} offen offset:1024")
    a("s_mov_b64 exec, -1")
    a("s_waitcnt vmcnt(0)")
    for i in range(4):
        sb = O[i]
        a(f"v_mfma_f32_32x32x16_bf16 {vr(sb,16)}, {vr(K1(0),4)}, {vr(Q1[i],4)}, 0")
        a(f"v_mfma_f32_32x32x8_bf16 {vr(sb,16)}, {vr(K2(0),2)}, {vr(Q2[i],2)}, {vr(sb,16)}")
    a("s_nop 15")
    a("s_nop 3")
    for i in range(4):
        sb = O[i]
        for r in range(0, 16, 2):
            a(f"v_max3_f32 v{vM[i]}, v{sb+r}, v{sb+r+1}, v{vM[i]}")
    a(f"s_add_u32 s{sKoff}, s{sKoff}, 1280")
    a(f"s_add_u32 s{sCnt}, s{sCnt}, 1")
    a(f"s_cmp_lt_u32 s{sCnt}, s{sNmax}")
    a(f"s_cbranch_scc1 {name}_maxloop")
    def loads(s):
        a(f"buffer_load_dwordx2 {vr(K1(s),2)}, v{vK1o}, s[4:7], s{sKoff} offen")
        a(f"buffer_load_dwordx2 {vr(K1(s)+2,2)}, v{vK1o}, s[4:7], s{sKoff} offen offset:256")
        a("s_mov_b64 exec, s[32:33]")
        a(f"buffer_load_dwordx2 {vr(K2(s),2)}, v{vK2o}, s[4:7], s{sKoff} offen offset:1024")
        a("s_mov_b64 exec, s[34:35]")
        a(f"buffer_load_dwordx4 {vr(V1(s),4)}, v{vVo}, s[4:7], s{sVoff} offen")
        a(f"buffer_load_dwordx4 {vr(V2(s),4)}, v{vVo}, s[4:7], s{sVoff} offen offset:1024")
        a("s_mov_b64 exec, -1")
        a(f"s_add_u32 s{sKoff}, s{sKoff}, 1280")
        a(f"s_add_u32 s{sVoff}, s{sVoff}, 2048")
    a(f"s_mov_b32 s{sKoff}, s{sKbase}")
    a(f"s_mov_b32 s{sVoff}, s{sVbase}")
    loads(0)
    for i in range(4):
        a(f"v_mov_b32 v{vT0}, v{vM[i]}")
        a("s_nop 1")
        a(f"v_permlane32_swap_b32 v{vT0}, v{vM[i]}")
        a("s_nop 1")
        a(f"v_max_f32 v{vM[i]}, v{vM[i]}, v{vT0}")
        a(f"v_sub_f32 v{vT0}, 0, v{vM[i]}")
        a(f"v_and_b32 v{vT1}, 0xffff0000, v{vT0}")
        a(f"v_sub_f32 v{vT0}, v{vT0}, v{vT1}")
        a(f"v_and_b32 v{vT2}, 0xffff0000, v{vT0}")
        a(f"v_sub_f32 v{vT0}, v{vT0}, v{vT2}")
        a(f"v_lshrrev_b32 v{vT1}, 16, v{vT1}")
        a(f"v_or_b32 v{vT1}, v{vT1}, v{vT2}")
        a(f"v_lshrrev_b32 v{vT0}, 16, v{vT0}")
        a(f"s_mov_b64 exec, s[{sHi}:{sHi+1}]")
        a(f"v_mov_b32 v{Q2[i]}, v{vT1}")
        a(f"v_mov_b32 v{Q2[i]+1}, v{vT0}")
        a("s_mov_b64 exec, -1")
    for i in range(4):
        for r in range(16):
            a(f"v_mov_b32 v{O[i]+r}, 0")
    for r in range(4):
        a(f"v_mov_b32 v{Sb[1]+8+r}, 0")
    a("s_mov_b64 exec, s[34:35]")
    for r in range(4):
        a(f"v_mov_b32 v{V2(1)+r}, 0")
    a("s_mov_b64 exec, -1")
    a("s_waitcnt vmcnt(0)")
    def qk_a(s, q, sb): a(f"v_mfma_f32_32x32x16_bf16 {vr(sb,16)}, {vr(K1(s),4)}, {vr(Q1[q],4)}, 0")
    def qk_b(s, q, sb): a(f"v_mfma_f32_32x32x8_bf16 {vr(sb,16)}, {vr(K2(s),2)}, {vr(Q2[q],2)}, {vr(sb,16)}")
    def pv(s, q, sb, j):
        vv = V1(s) if j == 0 else V2(s)
        a(f"v_mfma_f32_32x32x16_bf16 {vr(O[q],16)}, {vr(vv,4)}, {vr(sb+8*j,4)}, {vr(O[q],16)}")
    def ex(sb, r): a(f"v_exp_f32 v{sb+r}, v{sb+r}")
    def cv(sb, p):
        base = sb + 8*(p//4)
        a(f"v_cvt_pk_bf16_f32 v{base + p%4}, v{sb+2*p}, v{sb+2*p+1}")
    qk_a(0, 0, Sb[0]); qk_b(0, 0, Sb[0])
    a("s_nop 15")
    a(f"s_mov_b32 s{sCnt}, 0")
    if stamps: a("s_memtime s[42:43]\ns_waitcnt lgkmcnt(0)")
    a.label(f"{name}_loop")
    for t in range(2):
        for q in range(4):
            u = 4*t + q
            sb = Sb[u % 2]; so = Sb[(u+1) % 2]
            ps, pq = (t, q-1) if q > 0 else (1-t, 3)
            ns, nq = (t, q+1) if q < 3 else (1-t, 0)
            ex(sb, 0); ex(sb, 1)
            pv(ps, pq, so, 1)
            if q == 0:
                loads(1-t)
            for r in range(2, 6): ex(sb, r)
            if q == 3:
                a("s_waitcnt vmcnt(0)")
            qk_a(ns, nq, so)
            ex(sb, 6); ex(sb, 7)
            for p in range(4): cv(sb, p)
            qk_b(ns, nq, so)
            for r in range(8, 12): ex(sb, r)
            pv(t, q, sb, 0)
            for r in range(12, 16): ex(sb, r)
            for p in range(4, 8): cv(sb, p)
    a(f"s_add_u32 s{sCnt}, s{sCnt}, 1")
    a(f"s_cmp_lt_u32 s{sCnt}, 8")
    a(f"s_cbranch_scc1 {name}_loop")
    if stamps: a("s_memtime s[44:45]\ns_waitcnt lgkmcnt(0)")
    a("s_nop 1")
    pv(1, 3, Sb[1], 1)
    a("s_waitcnt vmcnt(0)")
    a("s_nop 15")
    a("s_nop 3")
    a("s_mov_b32 s26, 0x5d800000")
    a(f"v_max_f32 v{vT0}, v{O[0]+10}, v{O[1]+10}")
    a(f"v_cmp_nlt_f32 s[28:29], v{O[0]+10}, s26")
    a(f"v_cmp_nlt_f32 s[30:31], v{O[1]+10}, s26")
    a("s_or_b64 s[28:29], s[28:29], s[30:31]")
    a(f"v_cmp_nlt_f32 s[30:31], v{O[2]+10}, s26")
    a("s_or_b64 s[28:29], s[28:29], s[30:31]")
    a(f"v_cmp_nlt_f32 s[30:31], v{O[3]+10}, s26")
    a("s_or_b64 s[28:29], s[28:29], s[30:31]")
    a("s_cmp_eq_u64 s[28:29], 0")
    a(f"s_cbranch_scc1 {name}_combine")
    a(f"s_cmp_eq_u32 s{sNmax}, 16")
    a(f"s_cbranch_scc1 {name}_combine")
    a(f"s_mov_b32 s{sNmax}, 16")
    a(f"s_branch {name}_maxpass")
    a.label(f"{name}_combine")
    for i in range(4):
        a(f"v_mov_b32 v{O[i]+11}, v{vM[i]}")
    a(f"s_mul_i32 s26, s{sWave}, 12288")
    a(f"v_add_u32 v{vT0}, s26, v{vVo}")
    for i in range(4):
        for c in range(3):
            a(f"ds_write_b128 v{vT0}, {vr(O[i]+4*c,4)} offset:{(i*3+c)*1024}")
    a("s_waitcnt lgkmcnt(0)")
    a("s_barrier")
    a(f"s_mul_i32 s26, s{sQg}, 12288")
    a(f"s_mul_i32 s27, s{sKq}, 3072")
    a("s_add_u32 s26, s26, s27")
    a(f"v_add_u32 v{vT0}, s26, v{vVo}")
    P = [O[0], O[1], O[2], O[3]]
    a(f"v_add_u32 v{vT1}, 49152, v{vT0}")
    for k in range(4):
        for c in range(3):
            a(f"ds_read_b128 {vr(P[k]+4*c,4)}, v{vT0 if k < 2 else vT1} offset:{(k%2)*24576 + c*1024}")
    a("s_waitcnt lgkmcnt(0)")
    a(f"v_max_f32 v{vT1}, v{P[0]+11}, v{P[1]+11}")
    a(f"v_max3_f32 v{vT1}, v{P[2]+11}, v{P[3]+11}, v{vT1}")
    for k in range(4):
        a(f"v_sub_f32 v{P[k]+11}, v{P[k]+11}, v{vT1}")
    for k in range(4):
        a(f"v_exp_f32 v{P[k]+11}, v{P[k]+11}")
    a("s_nop 0")
    for r in range(11):
        a(f"v_mul_f32 v{P[0]+r}, v{P[0]+r}, v{P[0]+11}")
    for k in range(1, 4):
        for r in range(11):
            a(f"v_fma_f32 v{P[0]+r}, v{P[k]+r}, v{P[k]+11}, v{P[0]+r}")
    a(f"v_rcp_f32 v{vT1}, v{P[0]+10}")
    a("s_nop 0")
    for r in range(10):
        a(f"v_mul_f32 v{P[0]+r}, v{P[0]+r}, v{vT1}")
    for p in range(5):
        a(f"v_cvt_pk_bf16_f32 v{P[1]+p}, v{P[0]+2*p}, v{P[0]+2*p+1}")
    a(f"v_and_b32 v{vT0}, 31, v{vLane}")
    a(f"v_lshrrev_b32 v{vT1}, 5, v{vLane}")
    a(f"v_lshlrev_b32 v{vT0}, 4, v{vT0}")
    a(f"v_mul_u32_u24 v{vT1}, 10, v{vT1}")
    a(f"s_mul_i32 s27, s{sHead}, 20")
    a(f"v_add_u32 v{vT1}, s27, v{vT1}")
    a(f"s_lshl_b32 s26, s{sQb}, 3")
    a(f"s_lshl_b32 s27, s{sQg}, 2")
    a("s_add_u32 s26, s26, s27")
    a(f"s_add_u32 s26, s26, s{sKq}")
    a("s_mul_i32 s26, s26, 40960")
    a(f"s_add_u32 s26, s26, {OFF_O}")
    for p in range(5):
        a(f"v_add_u32 v{P[2]+p}, {2*p}, v{vT1}")
        a(f"v_lshrrev_b32 v{vT2}, 3, v{P[2]+p}")
        a(f"v_and_b32 v{P[2]+p}, 7, v{P[2]+p}")
        a(f"v_lshl_add_u32 v{P[2]+p}, v{P[2]+p}, 1, v{vT0}")
        a(f"v_lshl_add_u32 v{P[2]+p}, v{vT2}, 9, v{P[2]+p}")
        a(f"buffer_store_dword v{P[1]+p}, v{P[2]+p}, s[4:7], s26 offen")
    if stamps:
        a("s_memtime s[46:47]\ns_memrealtime s[50:51]\ns_waitcnt lgkmcnt(0)\ns_sub_u32 s52, s50, s48")
        a("s_sub_u32 s42, s42, s40\ns_sub_u32 s44, s44, s40\ns_sub_u32 s46, s46, s40")
        a("v_mov_b32 v8, s52\nv_mov_b32 v9, s42\nv_mov_b32 v10, s44\nv_mov_b32 v11, s46")
        a(f"s_lshl_b32 s26, s2, 3\ns_add_u32 s26, s26, s{sWave}\ns_lshl_b32 s26, s26, 4\ns_add_u32 s26, s26, {24<<20}")
        a("v_mov_b32 v12, 0")
        a("s_mov_b64 exec, 1")
        a("buffer_store_dwordx4 v[8:11], v12, s[4:7], s26 offen")
    a.label(f"{name}_end")
    a("s_endpgm")
    return NV, 98304
```

```python
from genlib import *
import struct, os
EXP = os.environ.get("P1EXP","")
def f2u(x): return struct.unpack("<I", struct.pack("<f", x))[0]

CSCALE = (20 ** -0.5) * 1.4426950408889634
STAGE = 49152

def gen_p1(a, name="p1_kernel", stamps=False):
    kernel_header(a, name)
    sX, sW, sWS, sB1 = 4, 8, 12, 16
    sWave, sRb, sCb, sRot, sXk, sWk, sWk2 = 20, 21, 22, 23, 24, 25, 26
    sM0x, sM0w = 27, 28
    sT = [29, 30, 31, 32]
    sCol, sTok = 33, 34
    sTmp = 36
    sLo = 44
    vLane, vR, vH = 1, 2, 3
    vXd = [4, 5, 6, 7]
    vWd = [8, 9]
    vXa = [10, 11, 12, 13]
    vWa = [14, 15, 16, 17]
    vSum, vSq, vCs = [18, 19], [20, 21], [22, 23]
    sPar = 35
    ST = 176
    vT = list(range(26, 40))
    XF = [40, 44]
    WF = [[48 + 4*t for t in range(4)], [64 + 4*t for t in range(4)]]
    ACC = [80 + 16*t for t in range(4)]
    EP = 144
    NV = 200

    a("s_cmp_ge_u32 s2, 256")
    a(f"s_cbranch_scc1 {name}_end")
    a(f"s_load_dwordx4 s[36:39], s[0:1], {KA['x']}")
    a(f"s_load_dwordx4 s[40:43], s[0:1], {KA['w1']}")
    a(f"s_load_dwordx2 s[46:47], s[0:1], {KA['ws']}")
    if stamps: a("s_memtime s[60:61]\ns_memrealtime s[68:69]")
    a("v_lshrrev_b32 v4, 6, v0")
    a(f"v_and_b32 v{vLane}, 63, v0")
    a("s_and_b32 s48, s2, 7")
    a(f"v_readfirstlane_b32 s{sWave}, v4")
    a("s_lshr_b32 s49, s2, 3")
    a("s_and_b32 s50, s48, 1")
    a("s_lshr_b32 s51, s48, 1")
    a("s_and_b32 s52, s49, 3")
    a("s_lshl_b32 s50, s50, 2")
    a(f"s_add_u32 s{sRb}, s50, s52")
    a("s_lshr_b32 s52, s49, 2")
    a("s_lshl_b32 s51, s51, 3")
    a(f"s_add_u32 s{sCb}, s51, s52")
    a(f"s_cmp_eq_u32 s{sCb}, 31")
    a(f"s_cbranch_scc1 {name}_end")
    a(f"v_and_b32 v{vR}, 31, v{vLane}")
    a(f"v_lshrrev_b32 v{vH}, 5, v{vLane}")
    a(f"s_mov_b32 s{sLo}, -1")
    a(f"s_mov_b32 s{sLo+1}, 0")
    a(f"s_lshl_b32 s{sTok}, s{sRb}, 8")
    a(f"s_lshl_b32 s48, s{sWave}, 5")
    a(f"s_add_u32 s{sTok}, s{sTok}, s48")
    t0, t1, t2, t3 = vT[0], vT[1], vT[2], vT[3]
    a(f"v_lshrrev_b32 v{t0}, 3, v{vLane}")
    a(f"v_and_b32 v{t1}, 7, v{vLane}")
    for n in range(4):
        a(f"v_add_u32 v{t2}, {8*n}, v{t0}")
        a(f"v_lshrrev_b32 v{t3}, 1, v{t2}")
        a(f"v_and_b32 v{t3}, 7, v{t3}")
        a(f"v_xor_b32 v{t3}, v{t3}, v{t1}")
        a(f"v_mul_u32_u24 v{t2}, 1280, v{t2}")
        a(f"v_lshl_add_u32 v{vXd[n]}, v{t3}, 4, v{t2}")
    a(f"v_lshrrev_b32 v{t0}, 1, v{vR}")
    a(f"v_and_b32 v{t0}, 7, v{t0}")
    a(f"s_lshl_b32 s48, s{sWave}, 12")
    a(f"v_lshlrev_b32 v{t1}, 7, v{vR}")
    a(f"v_add_u32 v{t1}, s48, v{t1}")
    for j in range(4):
        a(f"v_add_u32 v{t2}, {2*j}, v{vH}")
        a(f"v_xor_b32 v{t2}, v{t2}, v{t0}")
        a(f"v_lshl_add_u32 v{vXa[j]}, v{t2}, 4, v{t1}")
    for r in vSum + vSq + vCs:
        a(f"v_mov_b32 v{r}, 0")
    for t in range(4):
        for r in range(16):
            a(f"v_mov_b32 v{ACC[t]+r}, 0")
    a(f"v_lshlrev_b32 v{t0}, 2, v0")
    a(f"v_add_u32 v{t0}, {3*STAGE}, v{t0}")
    a(f"ds_write_b32 v{t0}, v{vSum[0]}")
    a("s_waitcnt lgkmcnt(0)")
    make_srd(a, sX, 36, S*D*2)
    make_srd(a, sWS, 46, WS_BYTES)
    make_srd(a, sB1, 42, F*2)
    a(f"s_mul_i32 s{sXk}, s{sTok}, 1280")
    a(f"s_lshl_b32 s{sM0x}, s{sWave}, 12")
    a(f"s_cmp_ge_u32 s{sCb}, 15")
    a(f"s_cbranch_scc1 {name}_F")
    make_srd(a, sW, 38, D*3*D*2)
    a(f"s_cmp_ge_u32 s{sCb}, 10")
    a(f"s_cbranch_scc1 {name}_V")
    body(a, name, "QK", locals())
    a.label(f"{name}_V")
    body(a, name, "V", locals())
    a.label(f"{name}_F")
    make_srd(a, sW, 40, D*F*2)
    body(a, name, "F", locals())
    a.label(f"{name}_end")
    a("s_endpgm")
    return NV, 3*STAGE + 4096


def body(a, name, typ, L):
    g = type("G", (), L)
    NT = 3 if typ == "F" else 4
    rowb = 3072 if typ == "F" else 3840
    vT = g.vT; t0, t1, t2, t3, t4, t5 = vT[:6]
    vLane, vR, vH = g.vLane, g.vR, g.vH
    sWave = g.sWave
    if typ == "F":
        a(f"s_sub_u32 s48, s{g.sCb}, 15")
        a(f"s_mul_i32 s{g.sCol}, s48, 96")
        a(f"s_mul_i32 s48, s{sWave}, 43")
        a("s_lshr_b32 s48, s48, 7")
        a("s_mul_i32 s48, s48, 3")
        a(f"s_sub_u32 s{g.sRot}, s{sWave}, s48")
        a(f"s_mul_i32 s{g.sPar}, s{sWave}, 43")
        a(f"s_lshr_b32 s{g.sPar}, s{g.sPar}, 7")
    else:
        a(f"s_lshr_b32 s{g.sPar}, s{sWave}, 2")
        a(f"s_lshl_b32 s{g.sCol}, s{g.sCb}, 7")
        a(f"s_and_b32 s{g.sRot}, s{sWave}, 3")
    for t in range(NT):
        a(f"s_add_u32 s{g.sT[t]}, s{g.sRot}, {t}")
        a(f"s_cmp_ge_u32 s{g.sT[t]}, {NT}")
        a(f"s_cselect_b32 s48, {NT}, 0")
        a(f"s_sub_u32 s{g.sT[t]}, s{g.sT[t]}, s48")
    if NT == 4:
        a(f"v_lshrrev_b32 v{t0}, 4, v{vLane}")
        a(f"v_bfe_u32 v{t1}, v{vLane}, 2, 2")
        a(f"v_xor_b32 v{t1}, v{t1}, v{t0}")
        a(f"v_and_b32 v{t2}, 3, v{vLane}")
        a(f"v_mul_u32_u24 v{t0}, {rowb}, v{t0}")
        a(f"v_lshl_add_u32 v{t0}, v{t1}, 6, v{t0}")
        a(f"v_lshl_add_u32 v{g.vWd[0]}, v{t2}, 4, v{t0}")
        a(f"v_add_u32 v{g.vWd[1]}, {4*rowb}, v{g.vWd[0]}")
        a(f"s_lshl_b32 s{g.sM0w}, s{sWave}, 11")
    else:
        for n in range(2):
            a(f"v_add_u32 v{t0}, {64*n}, v{vLane}")
            a(f"v_mul_u32_u24 v{t1}, 171, v{t0}")
            a(f"v_lshrrev_b32 v{t1}, 11, v{t1}")
            a(f"v_mul_u32_u24 v{t2}, 12, v{t1}")
            a(f"v_sub_u32 v{t2}, v{t0}, v{t2}")
            a(f"v_mul_u32_u24 v{t1}, {rowb}, v{t1}")
            a(f"v_lshl_add_u32 v{g.vWd[n]}, v{t2}, 4, v{t1}")
        a(f"s_mul_i32 s{g.sM0w}, s{sWave}, 1536")
    a(f"s_add_u32 s{g.sM0w}, s{g.sM0w}, 32768")
    a(f"s_mul_i32 s{g.sWk}, s{sWave}, {8*rowb}")
    a(f"s_lshl_b32 s48, s{g.sCol}, 1")
    a(f"s_add_u32 s{g.sWk}, s{g.sWk}, s48")
    wstride = 256 if NT == 4 else 192
    a(f"v_bfe_u32 v{t0}, v{vLane}, 2, 2")
    a(f"v_and_b32 v{t1}, 3, v{vLane}")
    a(f"v_bfe_u32 v{t2}, v{vLane}, 4, 1")
    a(f"v_lshl_add_u32 v{t3}, v{vH}, 3, v{t0}")
    a(f"v_mul_u32_u24 v{t3}, {wstride}, v{t3}")
    a(f"v_lshl_add_u32 v{t3}, v{t2}, 5, v{t3}")
    a(f"v_lshl_add_u32 v{t3}, v{t1}, 3, v{t3}")
    a(f"v_add_u32 v{t3}, 32768, v{t3}")
    for t in range(NT):
        if NT == 4:
            a(f"v_xor_b32 v{t4}, s{g.sT[t]}, v{t0}")
            a(f"v_lshl_add_u32 v{g.vWa[t]}, v{t4}, 6, v{t3}")
        else:
            a(f"s_lshl_b32 s48, s{g.sT[t]}, 6")
            a(f"v_add_u32 v{g.vWa[t]}, s48, v{t3}")

    ndma = 6
    cnt = [0]
    def dma(c):
        st = (c % 3) * STAGE
        for n in range(4):
            a(f"s_add_u32 m0, s{g.sM0x}, {st + n*1024}")
            a("s_nop 0")
            a(f"buffer_load_dwordx4 v{g.vXd[n]}, s[{g.sX}:{g.sX+3}], s{g.sXk} offen lds")
        a(f"s_add_u32 s{g.sXk}, s{g.sXk}, 128")
        for n in range(2):
            a(f"s_add_u32 m0, s{g.sM0w}, {st + n*1024}")
            if NT == 3 and n == 1:
                a(f"s_mov_b64 exec, s[{g.sLo}:{g.sLo+1}]")
            else:
                a("s_nop 0")
            a(f"buffer_load_dwordx4 v{g.vWd[n]}, s[{g.sW}:{g.sW+3}], s{g.sWk} offen lds")
            if NT == 3 and n == 1:
                a("s_mov_b64 exec, -1")
        a(f"s_add_u32 s{g.sWk}, s{g.sWk}, {64*rowb}")
    nrd = 1 + 2*NT
    def reads(j):
        if "noread" in EXP: return
        b = j % 2
        a(f"ds_read_b128 {vr(g.XF[b],4)}, v{g.vXa[j]}")
        for t in range(NT):
            for rd in range(2):
                a(f"ds_read_b64_tr_b16 {vr(g.WF[b][t]+2*rd,2)}, v{g.vWa[t]} offset:{(16*j+4*rd)*wstride}")
    def bump(delta):
        for r in g.vXa + g.vWa[:NT]:
            a(f"v_add_u32 v{r}, {delta & 0xffffffff:#x}, v{r}")
    def mfmas(j):
        b = j % 2
        if "nomfma" in EXP: return
        for t in range(NT):
            if typ == "V":
                a(f"v_mfma_f32_32x32x16_bf16 {vr(g.ACC[t],16)}, {vr(g.XF[b],4)}, {vr(g.WF[b][t],4)}, {vr(g.ACC[t],16)}")
            else:
                a(f"v_mfma_f32_32x32x16_bf16 {vr(g.ACC[t],16)}, {vr(g.WF[b][t],4)}, {vr(g.XF[b],4)}, {vr(g.ACC[t],16)}")
            if "nodot" in EXP: continue
            ST = g.ST
            if t == 0:
                lab = f"{name}_{typ}_cs{cnt[0]}"; cnt[0] += 1
                a(f"s_cmp_lg_u32 s{g.sPar}, {j % 2}")
                a(f"s_cbranch_scc1 {lab}")
                for r in range(4):
                    a(f"v_and_b32 v{ST+2*r}, 0xffff0000, v{g.WF[b][0]+r}")
                    a(f"v_lshlrev_b32 v{ST+2*r+1}, 16, v{g.WF[b][0]+r}")
                for r in range(8):
                    a(f"v_add_f32 v{g.vCs[r%2]}, v{g.vCs[r%2]}, v{ST+r}")
                a.label(lab)
            elif t == 1:
                for r in range(4):
                    a(f"v_and_b32 v{ST+8+2*r}, 0xffff0000, v{g.XF[b]+r}")
                    a(f"v_lshlrev_b32 v{ST+8+2*r+1}, 16, v{g.XF[b]+r}")
                for r in range(4):
                    a(f"v_add_f32 v{g.vSum[r%2]}, v{g.vSum[r%2]}, v{ST+8+r}")
            elif t == 2:
                for r in range(4, 8):
                    a(f"v_add_f32 v{g.vSum[r%2]}, v{g.vSum[r%2]}, v{ST+8+r}")
                for r in range(8):
                    a(f"v_fmac_f32 v{g.vSq[r%2]}, v{ST+8+r}, v{ST+8+r}")
    if "twice" in EXP:
        a("s_mov_b32 s72, 0")
        a.label(f"{name}_{typ}_again")
    dma(0); dma(1); dma(2)
    a(f"s_waitcnt vmcnt({2*ndma})")
    a("s_barrier")
    if g.stamps: a("s_memtime s[64:65]\ns_waitcnt lgkmcnt(0)")
    reads(0)
    for c in range(10):
        for j in range(3):
            reads(j+1)
            a(f"s_waitcnt lgkmcnt({nrd})")
            mfmas(j)
        if c < 9:
            a(f"s_waitcnt vmcnt({ndma if c+2 <= 9 else 0}) lgkmcnt(0)")
            a("s_barrier")
            if c + 3 <= 9 and "nodma" not in EXP:
                dma(c+3)
            bump(STAGE if (c+1) % 3 else -2*STAGE)
            reads(0)
        else:
            a("s_waitcnt lgkmcnt(0)")
        mfmas(3)
    if "twice" in EXP:
        a("s_barrier")
        a(f"s_sub_u32 s{g.sXk}, s{g.sXk}, 1280")
        a(f"s_sub_u32 s{g.sWk}, s{g.sWk}, {640*rowb}")
        a("s_add_u32 s72, s72, 1")
        a("s_cmp_lt_u32 s72, 2")
        a(f"s_cbranch_scc1 {name}_{typ}_again")
    if g.stamps: a("s_memtime s[66:67]\ns_waitcnt lgkmcnt(0)")
    EP = g.EP
    CSB = 0
    vSum, vSq, vCs = g.vSum, g.vSq, g.vCs
    if typ == "F":
        a(f"s_lshl_b32 s48, s{g.sT[0]}, 5")
        a(f"s_add_u32 s48, s48, s{g.sCol}")
        a("s_lshl_b32 s48, s48, 1")
        a(f"v_lshlrev_b32 v{t5}, 1, v{vR}")
        a(f"buffer_load_ushort v{t5}, v{t5}, s[{g.sB1}:{g.sB1+3}], s48 offen")
    a("s_nop 2")
    a(f"v_add_f32 v{vSum[0]}, v{vSum[0]}, v{vSum[1]}")
    a(f"v_add_f32 v{vSq[0]}, v{vSq[0]}, v{vSq[1]}")
    a(f"v_add_f32 v{vCs[0]}, v{vCs[0]}, v{vCs[1]}")
    for r in (vSum, vSq, vCs):
        a(f"v_mov_b32 v{r[1]}, v{r[0]}")
    a("s_nop 1")
    for r in (vSum, vSq, vCs):
        a(f"v_permlane32_swap_b32 v{r[0]}, v{r[1]}")
    a("s_nop 1")
    for r in (vSum, vSq, vCs):
        a(f"v_add_f32 v{r[0]}, v{r[0]}, v{r[1]}")
    a(f"s_lshl_b32 s48, s{g.sT[0]}, 7")
    a(f"v_lshlrev_b32 v{t0}, 2, v{vR}")
    a(f"v_add_u32 v{t0}, s48, v{t0}")
    a(f"v_add_u32 v{t0}, {3*STAGE}, v{t0}")
    a(f"s_mov_b64 exec, s[{g.sLo}:{g.sLo+1}]")
    a(f"ds_add_f32 v{t0}, v{vCs[0]} offset:{CSB}")
    a("s_mov_b64 exec, -1")
    if typ == "F":
        a("s_waitcnt vmcnt(0)")
        a(f"v_lshlrev_b32 v{t5}, 16, v{t5}")
        a(f"ds_write_b32 v{t0}, v{t5} offset:{CSB+512}")
    vMean, vVar, vRs, vMr = vSum[0], vSq[0], vSum[1], vSq[1]
    a(f"v_mul_f32 v{vMean}, {f2u(1.0/640):#x}, v{vSum[0]}")
    a(f"v_mul_f32 v{vVar}, {f2u(1.0/640):#x}, v{vSq[0]}")
    a(f"v_fma_f32 v{vVar}, -v{vMean}, v{vMean}, v{vVar}")
    a(f"v_max_f32 v{vVar}, 0, v{vVar}")
    a(f"v_add_f32 v{t1}, {f2u(1e-5):#x}, v{vVar}")
    a(f"v_rsq_f32 v{vRs}, v{t1}")
    a("s_nop 0")
    if typ == "F":
        a(f"v_mul_f32 v{t1}, v{vRs}, v{vRs}")
        a(f"v_mul_f32 v{t1}, v{t1}, v{vVar}")
        a(f"v_add_f32 v{t1}, {f2u(1e-5):#x}, v{t1}")
        a(f"v_rsq_f32 v{t1}, v{t1}")
        a("s_nop 0")
        a(f"v_mul_f32 v{vRs}, v{vRs}, v{t1}")
    if typ == "QK":
        a(f"s_cmp_lt_u32 s{g.sCb}, 5")
        a(f"s_cselect_b32 s48, {f2u(CSCALE):#x}, 1.0")
        a(f"v_mul_f32 v{vRs}, s48, v{vRs}")
    a(f"v_mul_f32 v{vMr}, v{vMean}, v{vRs}")
    if typ == "V":
        a(f"s_lshl_b32 s48, s{sWave}, 8")
        a(f"v_lshlrev_b32 v{t1}, 2, v{vR}")
        a(f"v_add_u32 v{t1}, s48, v{t1}")
        a(f"v_add_u32 v{t1}, {3*STAGE}, v{t1}")
        a(f"ds_write_b32 v{t1}, v{vRs} offset:{CSB+1024}")
        a(f"ds_write_b32 v{t1}, v{vMr} offset:{CSB+1024+128}")
    a("s_waitcnt lgkmcnt(0)")
    a("s_barrier")
    if typ == "V":
        RS, MR = EP, EP+16
        a(f"s_lshl_b32 s48, s{sWave}, 8")
        a(f"v_lshlrev_b32 v{t1}, 4, v{vH}")
        a(f"v_add_u32 v{t1}, s48, v{t1}")
        a(f"v_add_u32 v{t1}, {3*STAGE}, v{t1}")
        for q in range(4):
            a(f"ds_read_b128 {vr(RS+4*q,4)}, v{t1} offset:{CSB+1024+32*q}")
            a(f"ds_read_b128 {vr(MR+4*q,4)}, v{t1} offset:{CSB+1024+128+32*q}")
        CSv = EP+32
        for t in range(NT):
            a(f"s_lshl_b32 s48, s{g.sT[t]}, 7")
            a(f"v_lshlrev_b32 v{t2}, 2, v{vR}")
            a(f"v_add_u32 v{t2}, s48, v{t2}")
            a(f"v_add_u32 v{t2}, {3*STAGE}, v{t2}")
            a(f"ds_read_b32 v{CSv+t}, v{t2} offset:{CSB}")
        a("s_waitcnt lgkmcnt(0)")
        a(f"s_lshl_b32 s49, s{g.sTok}, 6")
        a(f"s_add_u32 s49, s49, {OFF_V}")
        PK = EP+40
        for t in range(NT):
            a(f"s_lshl_b32 s48, s{g.sT[t]}, 5")
            a(f"s_add_u32 s48, s48, s{g.sCol}")
            a("s_sub_u32 s48, s48, 1280")
            a(f"v_add_u32 v{t0}, s48, v{vR}")
            a(f"v_mul_u32_u24 v{t1}, 3277, v{t0}")
            a(f"v_lshrrev_b32 v{t1}, 16, v{t1}")
            a(f"v_mul_u32_u24 v{t2}, 20, v{t1}")
            a(f"v_sub_u32 v{t2}, v{t0}, v{t2}")
            a(f"v_cmp_lt_u32 vcc, 9, v{t2}")
            a("s_nop 1")
            a(f"v_cndmask_b32 v{t3}, 0, 1, vcc")
            a(f"v_mul_u32_u24 v{t4}, 10, v{t3}")
            a(f"v_sub_u32 v{t2}, v{t2}, v{t4}")
            a(f"v_lshrrev_b32 v{t4}, 2, v{t2}")
            a(f"v_and_b32 v{t2}, 3, v{t2}")
            a(f"v_lshl_add_u32 v{t2}, v{t4}, 3, v{t2}")
            a(f"v_lshl_add_u32 v{t2}, v{t3}, 2, v{t2}")
            a(f"v_lshlrev_b32 v{t1}, 17, v{t1}")
            a(f"v_lshl_add_u32 v{t1}, v{t2}, 4, v{t1}")
            a(f"v_lshl_add_u32 v{t1}, v{vH}, 9, v{t1}")
            for r in range(16):
                a(f"v_mul_f32 v{t5}, v{MR+r}, v{CSv+t}")
                a(f"v_fma_f32 v{g.ACC[t]+r}, v{g.ACC[t]+r}, v{RS+r}, -v{t5}")
            pk = PK + 8*(t % 2)
            for p in range(8):
                a(f"v_cvt_pk_bf16_f32 v{pk+p}, v{g.ACC[t]+2*p}, v{g.ACC[t]+2*p+1}")
            a(f"buffer_store_dwordx4 {vr(pk,4)}, v{t1}, s[{g.sWS}:{g.sWS+3}], s49 offen")
            a(f"buffer_store_dwordx4 {vr(pk+4,4)}, v{t1}, s[{g.sWS}:{g.sWS+3}], s49 offen offset:1024")
    else:
        CSr, B1r = EP, EP+16
        PK = EP+32
        if typ == "QK":
            a(f"s_cmp_lt_u32 s{g.sCb}, 5")
            a(f"s_cselect_b32 s49, {OFF_Q}, {OFF_K}")
            a(f"s_cselect_b32 s50, 0, 640")
            a(f"s_mul_i32 s51, s{g.sTok}, 40")
            a("s_add_u32 s49, s49, s51")
            a(f"s_sub_u32 s50, s{g.sCol}, s50")
            a(f"v_lshlrev_b32 v{t5}, 3, v{vR}")
            a(f"s_mov_b32 s52, {81920 - 1280}")
        else:
            a(f"s_mul_i32 s49, s{g.sTok}, 3072")
            a(f"s_add_u32 s49, s49, {OFF_H}")
            a(f"s_lshl_b32 s51, s{g.sCol}, 6")
            a("s_add_u32 s49, s49, s51")
            a(f"v_lshlrev_b32 v{t5}, 4, v{vLane}")
        k1 = -2.0 * 0.7978845608028654 * 1.4426950408889634
        k2 = k1 * 0.044715
        if typ == "F":
            a(f"s_mov_b32 s52, {f2u(k2):#x}")
            a(f"v_mov_b32 v{t4}, {f2u(k1):#x}")
        for t in range(NT):
            a(f"s_lshl_b32 s48, s{g.sT[t]}, 7")
            a(f"v_lshlrev_b32 v{t0}, 4, v{vH}")
            a(f"v_add_u32 v{t0}, s48, v{t0}")
            a(f"v_add_u32 v{t0}, {3*STAGE}, v{t0}")
            for q in range(4):
                a(f"ds_read_b128 {vr(CSr+4*q,4)}, v{t0} offset:{CSB+32*q}")
                if typ == "F":
                    a(f"ds_read_b128 {vr(B1r+4*q,4)}, v{t0} offset:{CSB+512+32*q}")
            a("s_waitcnt lgkmcnt(0)")
            A = g.ACC[t]
            pk = PK + 8*(t % 2)
            if typ == "QK":
                for r in range(16):
                    a(f"v_mul_f32 v{CSr+r}, v{vMr}, v{CSr+r}")
                    a(f"v_fma_f32 v{A+r}, v{A+r}, v{vRs}, -v{CSr+r}")
                for p in range(8):
                    a(f"v_cvt_pk_bf16_f32 v{pk+p}, v{A+2*p}, v{A+2*p+1}")
                a(f"s_lshl_b32 s48, s{g.sT[t]}, 5")
                a("s_add_u32 s48, s48, s50")
                for q in range(4):
                    a(f"v_lshl_add_u32 v{t0}, v{vH}, 2, s48")
                    a(f"v_add_u32 v{t0}, {8*q}, v{t0}")
                    a(f"v_mul_u32_u24 v{t1}, 3277, v{t0}")
                    a(f"v_lshrrev_b32 v{t1}, 16, v{t1}")
                    a(f"v_lshl_add_u32 v{t0}, v{t0}, 6, v{t5}")
                    a(f"v_mad_u32_u24 v{vT[6+q]}, v{t1}, s52, v{t0}")
                    a(f"buffer_store_dwordx2 {vr(pk+2*q,2)}, v{vT[6+q]}, s[{g.sWS}:{g.sWS+3}], s49 offen")
            else:
                for r in range(16):
                    a(f"v_fma_f32 v{B1r+r}, -v{vMr}, v{CSr+r}, v{B1r+r}")
                    a(f"v_fma_f32 v{A+r}, v{A+r}, v{vRs}, v{B1r+r}")
                for r in range(16):
                    a(f"v_mul_f32 v{CSr+r}, v{A+r}, v{A+r}")
                    a(f"v_fma_f32 v{CSr+r}, v{CSr+r}, s52, v{t4}")
                    a(f"v_mul_f32 v{CSr+r}, v{CSr+r}, v{A+r}")
                for r in range(16):
                    a(f"v_exp_f32 v{CSr+r}, v{CSr+r}")
                for r in range(16):
                    a(f"v_add_f32 v{CSr+r}, 1.0, v{CSr+r}")
                for r in range(16):
                    a(f"v_rcp_f32 v{CSr+r}, v{CSr+r}")
                for r in range(16):
                    a(f"v_mul_f32 v{A+r}, v{A+r}, v{CSr+r}")
                for p in range(8):
                    a(f"v_cvt_pk_bf16_f32 v{pk+p}, v{A+2*p}, v{A+2*p+1}")
                a("s_nop 1")
                for pr in range(2):
                    a(f"v_permlane32_swap_b32 v{pk+4*pr}, v{pk+4*pr+2}")
                    a(f"v_permlane32_swap_b32 v{pk+4*pr+1}, v{pk+4*pr+3}")
                a(f"s_lshl_b32 s48, s{g.sT[t]}, 11")
                a("s_add_u32 s48, s48, s49")
                for pr in range(2):
                    a(f"buffer_store_dwordx4 {vr(pk+4*pr,4)}, v{t5}, s[{g.sWS}:{g.sWS+3}], s48 offen offset:{1024*pr}")
    if g.stamps:
        a("s_memtime s[62:63]\ns_memrealtime s[70:71]\ns_waitcnt lgkmcnt(0)")
        a("s_sub_u32 s62, s62, s60\ns_sub_u32 s70, s70, s68\ns_sub_u32 s64, s64, s60\ns_sub_u32 s66, s66, s60")
        a(f"v_mov_b32 v8, s70\nv_mov_b32 v9, s64\nv_mov_b32 v10, s66\nv_mov_b32 v11, s62")
        a(f"s_lshl_b32 s26, s2, 3\ns_add_u32 s26, s26, s{sWave}\ns_lshl_b32 s26, s26, 4\ns_add_u32 s26, s26, {24<<20}")
        a("v_mov_b32 v12, 0\ns_mov_b64 exec, 1")
        a(f"buffer_store_dwordx4 v[8:11], v12, s[{g.sWS}:{g.sWS+3}], s26 offen")
    a("s_endpgm")
```

```python
from genlib import *
import struct
def f2u(x): return struct.unpack("<I", struct.pack("<f", x))[0]

RING = 3
KB = 5120

def ksplit_setup(a, R):
    vLane, t0, t1, t2, t3 = R["vLane"], *R["t"][:4]
    for n in range(5):
        a(f"v_add_u32 v{t0}, {64*n}, v{vLane}")
        a(f"v_mul_u32_u24 v{t1}, 3277, v{t0}")
        a(f"v_lshrrev_b32 v{t1}, 16, v{t1}")
        a(f"v_mul_u32_u24 v{t2}, 20, v{t1}")
        a(f"v_sub_u32 v{t2}, v{t0}, v{t2}")
        a(f"v_mul_u32_u24 v{t1}, 1280, v{t1}")
        a(f"v_lshl_add_u32 v{R['vWd'][n]}, v{t2}, 4, v{t1}")
    a(f"v_bfe_u32 v{t0}, v{vLane}, 2, 2")
    a(f"v_and_b32 v{t1}, 3, v{vLane}")
    a(f"v_bfe_u32 v{t2}, v{vLane}, 4, 1")
    a(f"v_lshrrev_b32 v{t3}, 5, v{vLane}")
    a(f"v_lshl_add_u32 v{t3}, v{t3}, 3, v{t0}")
    a(f"v_mul_u32_u24 v{t3}, 320, v{t3}")
    a(f"v_lshl_add_u32 v{t3}, v{t2}, 5, v{t3}")
    a(f"v_lshl_add_u32 v{t3}, v{t1}, 3, v{t3}")
    a(f"v_add_u32 v{R['vWa']}, s{R['sLds']}, v{t3}")
    a(f"v_lshlrev_b32 v{R['vAo']}, 4, v{vLane}")

def ksplit_gemm(a, R, nks, sA, sAoff, sW, sWoff):
    ACC, AF, WF = R["ACC"], R["AF"], R["WF"]
    def issue(ks):
        b = ks % RING
        for n in range(5):
            a(f"s_add_u32 m0, s{R['sLds']}, {b*KB + n*1024}")
            if n == 0:
                a(f"buffer_load_dwordx4 {vr(AF[b],4)}, v{R['vAo']}, s[{sA}:{sA+3}], s{sAoff} offen")
            else:
                a("s_nop 0")
            a(f"buffer_load_dwordx4 v{R['vWd'][n]}, s[{sW}:{sW+3}], s{sWoff} offen lds")
        a(f"s_add_u32 s{sAoff}, s{sAoff}, 1024")
        a(f"s_add_u32 s{sWoff}, s{sWoff}, {16*1280}")
    def reads(ks):
        b = ks % RING
        for t in range(5):
            for rd in range(2):
                a(f"ds_read_b64_tr_b16 {vr(WF[t]+2*rd,2)}, v{R['vWa']} offset:{b*KB + rd*1280 + t*64}")
    for ks in range(min(RING-1, nks)):
        issue(ks)
    for ks in range(nks):
        nxt = ks + RING - 1
        if nxt < nks:
            issue(nxt)
        infl = min(nks - 1 - ks, RING - 1)
        a(f"s_waitcnt vmcnt({6*infl})")
        reads(ks)
        for t in range(5):
            a(f"s_waitcnt lgkmcnt({8-2*t})")
            a(f"v_mfma_f32_32x32x16_bf16 {vr(ACC[t],16)}, {vr(WF[t],4)}, {vr(AF[ks%RING],4)}, {vr(ACC[t],16)}")

def ksplit_reduce(a, R, dst):
    ACC = R["ACC"]; t0, t1 = R["t"][:2]
    a("s_nop 15")
    a("s_nop 3")
    a("s_barrier")
    a(f"s_mul_i32 s48, s{R['sWave']}, 5120")
    a(f"v_add_u32 v{t0}, s48, v{R['vAo']}")
    a(f"v_add_u32 v{t1}, 40960, v{t0}")
    for g in range(4):
        for t in range(5):
            a(f"ds_write_b128 v{t0 if g < 2 else t1}, {vr(ACC[t]+4*g,4)} offset:{(g%2)*20480 + t*1024}")
    a("s_waitcnt lgkmcnt(0)")
    a("s_barrier")
    a(f"s_mul_i32 s48, s{R['sWave']}, 20480")
    a(f"v_add_u32 v{t0}, s48, v{R['vAo']}")
    for w in range(4):
        for t in range(5):
            a(f"ds_read_b128 {vr(ACC[t]+4*w,4)}, v{t0} offset:{w*5120 + t*1024}")
    a("s_waitcnt lgkmcnt(0)")
    for t in range(5):
        for i in range(4):
            a(f"v_add_f32 v{ACC[t]+i}, v{ACC[t]+i}, v{ACC[t]+4+i}")
            a(f"v_add_f32 v{ACC[t]+8+i}, v{ACC[t]+8+i}, v{ACC[t]+12+i}")
            a(f"v_add_f32 v{dst[t]+i}, v{ACC[t]+i}, v{ACC[t]+8+i}")
    a("s_barrier")

def gen_p3(a, name="p3_kernel", stamps=False, with_ffn2=True):
    kernel_header(a, name)
    sX, sWo, sW2, sWS, sOut, sB2 = 4, 8, 12, 16, 20, 24
    sWave, sTt, sCb, sLds, sAoff, sWoff = 28, 29, 30, 31, 32, 33
    R = dict(vLane=1, t=[2, 3, 4, 5, 6, 7], vWd=[8, 9, 10, 11, 12], vWa=13, vAo=14, sLds=sLds, sWave=sWave,
             AF=[16, 20, 24], WF=[28 + 4*t for t in range(5)], ACC=[48 + 16*t for t in range(5)])
    G = [128 + 4*t for t in range(5)]
    Sv = [148 + 4*t for t in range(5)]
    XV = [168 + 2*t for t in range(5)]
    BV = [178 + 2*t for t in range(5)]
    NV = 188
    vLane = 1; t0, t1, t2, t3 = R["t"][:4]
    a("s_cmp_ge_u32 s2, 256")
    a(f"s_cbranch_scc1 {name}_end")
    a(f"s_load_dwordx2 s[36:37], s[0:1], {KA['x']}")
    a(f"s_load_dwordx2 s[38:39], s[0:1], {KA['wo']}")
    a(f"s_load_dwordx4 s[40:43], s[0:1], {KA['w2']}")
    a(f"s_load_dwordx2 s[44:45], s[0:1], {KA['out']}")
    a(f"s_load_dwordx2 s[46:47], s[0:1], {KA['ws']}")
    if stamps: a("s_memtime s[60:61]\ns_memrealtime s[68:69]")
    a("v_lshrrev_b32 v2, 6, v0")
    a(f"v_and_b32 v{vLane}, 63, v0")
    a("s_and_b32 s48, s2, 7")
    a(f"v_readfirstlane_b32 s{sWave}, v2")
    a("s_lshr_b32 s49, s2, 3")
    a(f"s_and_b32 s{sCb}, s48, 3")
    a("s_lshr_b32 s48, s48, 2")
    a("s_lshl_b32 s48, s48, 5")
    a(f"s_add_u32 s{sTt}, s48, s49")
    a(f"s_mul_i32 s{sLds}, s{sWave}, {RING*KB}")
    ksplit_setup(a, R)
    for t in range(5):
        for r in range(16):
            a(f"v_mov_b32 v{R['ACC'][t]+r}, 0")
    a("s_waitcnt lgkmcnt(0)")
    make_srd(a, sX, 36, S*D*2)
    make_srd(a, sWo, 38, D*D*2)
    make_srd(a, sW2, 40, F*D*2)
    make_srd(a, sB2, 42, D*2)
    make_srd(a, sOut, 44, S*D*2)
    make_srd(a, sWS, 46, WS_BYTES)
    vE = 15
    a(f"v_and_b32 v{t0}, 31, v{vLane}")
    a(f"v_lshrrev_b32 v{t1}, 5, v{vLane}")
    a(f"v_mul_u32_u24 v{t0}, 1280, v{t0}")
    a(f"v_lshl_add_u32 v{vE}, v{t1}, 3, v{t0}")
    a(f"s_mul_i32 s50, s{sCb}, 320")
    a(f"s_lshl_b32 s51, s{sWave}, 4")
    a("s_add_u32 s50, s50, s51")
    a(f"s_mul_i32 s51, s{sTt}, 40960")
    a("s_add_u32 s51, s51, s50")
    a(f"v_lshlrev_b32 v{t1}, 3, v{t1}")
    for t in range(5):
        a(f"buffer_load_dwordx2 {vr(XV[t],2)}, v{vE}, s[{sX}:{sX+3}], s51 offen offset:{64*t}")
        if with_ffn2:
            a(f"buffer_load_dwordx2 {vr(BV[t],2)}, v{t1}, s[{sB2}:{sB2+3}], s50 offen offset:{64*t}")
    if with_ffn2:
        a(f"s_mul_i32 s{sAoff}, s{sTt}, {96*1024}")
        a(f"s_mul_i32 s48, s{sWave}, {24*1024}")
        a(f"s_add_u32 s{sAoff}, s{sAoff}, s48")
        a(f"s_add_u32 s{sAoff}, s{sAoff}, {OFF_H}")
        a(f"s_mul_i32 s{sWoff}, s{sWave}, {384*1280}")
        a(f"s_mul_i32 s48, s{sCb}, 320")
        a(f"s_add_u32 s{sWoff}, s{sWoff}, s48")
        ksplit_gemm(a, R, 24, sWS, sAoff, sW2, sWoff)
        ksplit_reduce(a, R, G)
        for t in range(5):
            for i in range(4):
                src = BV[t] + i//2
                if i % 2 == 0: a(f"v_lshlrev_b32 v{t0}, 16, v{src}")
                else: a(f"v_and_b32 v{t0}, 0xffff0000, v{src}")
                a(f"v_add_f32 v{G[t]+i}, v{G[t]+i}, v{t0}")
                a(f"v_mul_f32 v{t1}, {f2u(-1.4426950408889634):#x}, v{G[t]+i}")
                a(f"v_exp_f32 v{t1}, v{t1}")
                a("s_nop 0")
                a(f"v_add_f32 v{t1}, 1.0, v{t1}")
                a(f"v_rcp_f32 v{t1}, v{t1}")
                a("s_nop 0")
                a(f"v_mul_f32 v{G[t]+i}, v{G[t]+i}, v{t1}")
        for t in range(5):
            for r in range(16):
                a(f"v_mov_b32 v{R['ACC'][t]+r}, 0")
    else:
        a(f"s_add_u32 s52, s51, {OFF_G}")
        for t in range(5):
            a(f"buffer_load_dwordx2 {vr(BV[t],2)}, v{vE}, s[{sWS}:{sWS+3}], s52 offen offset:{64*t}")
    a(f"s_mul_i32 s{sAoff}, s{sTt}, {40*1024}")
    a(f"s_mul_i32 s48, s{sWave}, {10*1024}")
    a(f"s_add_u32 s{sAoff}, s{sAoff}, s48")
    a(f"s_add_u32 s{sAoff}, s{sAoff}, {OFF_O}")
    a(f"s_mul_i32 s{sWoff}, s{sWave}, {160*1280}")
    a(f"s_mul_i32 s48, s{sCb}, 320")
    a(f"s_add_u32 s{sWoff}, s{sWoff}, s48")
    ksplit_gemm(a, R, 10, sWS, sAoff, sWo, sWoff)
    ksplit_reduce(a, R, Sv)
    for t in range(5):
        for i in range(4):
            src = XV[t] + i//2
            if i % 2 == 0: a(f"v_lshlrev_b32 v{t0}, 16, v{src}")
            else: a(f"v_and_b32 v{t0}, 0xffff0000, v{src}")
            if not with_ffn2:
                src = BV[t] + i//2
                if i % 2 == 0: a(f"v_lshlrev_b32 v{G[t]+i}, 16, v{src}")
                else: a(f"v_and_b32 v{G[t]+i}, 0xffff0000, v{src}")
            a(f"v_fma_f32 v{Sv[t]+i}, v{Sv[t]+i}, v{G[t]+i}, v{t0}")
        a(f"v_cvt_pk_bf16_f32 v{XV[t]}, v{Sv[t]}, v{Sv[t]+1}")
        a(f"v_cvt_pk_bf16_f32 v{XV[t]+1}, v{Sv[t]+2}, v{Sv[t]+3}")
        a(f"buffer_store_dwordx2 {vr(XV[t],2)}, v{vE}, s[{sOut}:{sOut+3}], s51 offen offset:{64*t}")
    if stamps:
        a("s_memtime s[62:63]\ns_memrealtime s[70:71]\ns_waitcnt lgkmcnt(0)")
        a("s_sub_u32 s62, s62, s60\ns_sub_u32 s70, s70, s68")
        a(f"v_mov_b32 v8, s70\nv_mov_b32 v9, s62\nv_mov_b32 v10, s62\nv_mov_b32 v11, s62")
        a(f"s_lshl_b32 s26, s2, 2\ns_add_u32 s26, s26, s{sWave}\ns_lshl_b32 s26, s26, 4\ns_add_u32 s26, s26, {24<<20}")
        a("v_mov_b32 v12, 0\ns_mov_b64 exec, 1")
        a(f"buffer_store_dwordx4 v[8:11], v12, s[{sWS}:{sWS+3}], s26 offen")
    a.label(f"{name}_end")
    a("s_endpgm")
    return NV, 81920
```

```python
class Asm:
    def __init__(self):
        self.lines = []
    def __call__(self, s=""):
        for ln in s.split("\n"):
            self.lines.append("    " + ln.strip() if ln.strip() and not ln.strip().endswith(":") else ln.strip())
    def label(self, name):
        self.lines.append(name + ":")
    def comment(self, s):
        self.lines.append("    ; " + s)
    def text(self):
        return "\n".join(self.lines) + "\n"

def vr(base, n=1):
    return f"v{base}" if n == 1 else f"v[{base}:{base+n-1}]"
def sr(base, n=1):
    return f"s{base}" if n == 1 else f"s[{base}:{base+n-1}]"

def kernel_header(a, name):
    a.lines.append(f".globl {name}")
    a.lines.append(".p2align 8")
    a.lines.append(f".type {name},@function")
    a.lines.append(f"{name}:")

def kernel_desc(name, vgpr, sgpr=102):
    acc = (vgpr + 3) // 4 * 4
    acc = min(acc, 256)
    return f""".amdhsa_kernel {name}
  .amdhsa_next_free_vgpr {vgpr}
  .amdhsa_next_free_sgpr {sgpr}
  .amdhsa_accum_offset {acc}
  .amdhsa_group_segment_fixed_size 0
  .amdhsa_kernarg_size 88
  .amdhsa_user_sgpr_count 2
  .amdhsa_user_sgpr_kernarg_segment_ptr 1
  .amdhsa_system_sgpr_workgroup_id_x 1
.end_amdhsa_kernel
"""

OFF_Q, OFF_K, OFF_V, OFF_H, OFF_O, OFF_G = 0, 3<<20, 6<<20, 10<<20, 16<<20, 20<<20
WS_BYTES = 268435456
S, D, F, H, DH = 2048, 640, 1536, 32, 20
KA = dict(x=0, wqkv=8, wo=16, bx=24, w1=32, b1=40, w2=48, b2=56, out=64, dbg=72, ws=80)

def make_srd(a, dst, src, nbytes):
    a(f"s_mov_b32 s{dst}, s{src}")
    a(f"s_and_b32 s{dst+1}, s{src+1}, 0xffff")
    a(f"s_mov_b32 s{dst+2}, {nbytes:#x}")
    a(f"s_mov_b32 s{dst+3}, 0x00020000")
```

```python
import sys
from genlib import *
from gen_attn import gen_attn
from gen_p1 import gen_p1
from gen_p3 import gen_p3

STAMPS = len(sys.argv) > 3 and sys.argv[3] == "stamps"
HDR = open("recurrent_scan__softmax_full_mha__mixer_channel_mlp__prompt.s.ref").read().split("; Override launch")[0]

def build(which):
    a = Asm()
    launches = []; descs = []
    body = Asm()
    for k in which:
        if k == "p3":
            nv, lds = gen_p3(body, "p3_kernel", stamps=STAMPS)
            launches.append(f"; @launch kernel=p3_kernel grid=(256,1,1) block=(256,1,1) lds={lds}")
            descs.append(kernel_desc("p3_kernel", nv))
        if k == "p1":
            nv, lds = gen_p1(body, "p1_kernel", stamps=STAMPS)
            launches.append(f"; @launch kernel=p1_kernel grid=(256,1,1) block=(512,1,1) lds={lds}")
            descs.append(kernel_desc("p1_kernel", nv))
        if k == "attn":
            nv, lds = gen_attn(body, "attn_kernel", stamps=STAMPS)
            launches.append(f"; @launch kernel=attn_kernel grid=(256,1,1) block=(512,1,1) lds={lds}")
            descs.append(kernel_desc("attn_kernel", nv))
    out = HDR + "\n".join(launches) + "\n" + '.amdgcn_target "amdgcn-amd-amdhsa--gfx950"\n.text\n' + body.text()
    out += '.section .rodata,"a"\n' + "".join(".p2align 6\n" + d for d in descs)
    return out

if __name__ == "__main__":
    which = sys.argv[2].split(",")
    open(sys.argv[1], "w").write(build(which))
```

```python
from genlib import *
from gen_p3 import gen_ffn2_waves
import os
AEXP = os.environ.get("AEXP", "")

def gen_attn(a, name="attn_kernel", stamps=False, ffn2=False, ring=3):
    kernel_header(a, name)
    vK1o, vK2o, vVo, vT0, vT1, vT2, vLane = 1, 2, 3, 4, 5, 6, 7
    Q1 = [8 + 6*i for i in range(4)]
    Q2 = [12 + 6*i for i in range(4)]
    O = [32 + 16*i for i in range(4)]
    Sb = [96, 112]
    KV = [128, 142]
    vM = [156, 157, 158, 159]
    NV = 160
    def K1(s): return KV[s]
    def K2(s): return KV[s] + 4
    def V1(s): return KV[s] + 6
    def V2(s): return KV[s] + 10
    sWS = 4
    sHead, sQb, sWave, sQg, sKq = 8, 9, 10, 11, 12
    sKoff, sVoff, sCnt, sNmax, sT, sKbase, sVbase = 13, 14, 15, 16, 17, 18, 19
    sHi = 20

    a("s_cmp_ge_u32 s2, 256")
    a(f"s_cbranch_scc1 {name}_end")
    a(f"s_load_dwordx2 s[24:25], s[0:1], {KA['ws']}")
    if stamps: a("s_memtime s[40:41]\ns_memrealtime s[48:49]")
    a("v_lshrrev_b32 v4, 6, v0")
    a(f"v_and_b32 v{vLane}, 63, v0")
    a("s_and_b32 s26, s2, 7")
    a("v_readfirstlane_b32 s10, v4")
    if ffn2:
        a("s_nop 3")
        a("s_cmp_ge_u32 s10, 8")
        a(f"s_cbranch_scc1 {name}_ffn2")
    a("s_lshr_b32 s27, s2, 3")
    a("s_and_b32 s28, s27, 3")
    a("s_lshl_b32 s26, s26, 2")
    a(f"s_add_u32 s{sHead}, s26, s28")
    a(f"s_lshr_b32 s{sQb}, s27, 2")
    a(f"s_and_b32 s{sQg}, s{sWave}, 1")
    a(f"s_lshr_b32 s{sKq}, s{sWave}, 1")
    a(f"s_mov_b32 s{sHi}, 0")
    a(f"s_mov_b32 s{sHi+1}, -1")
    a("s_mov_b32 s32, -1")
    a("s_mov_b32 s33, 0")
    a("s_mov_b32 s34, 0x33ffff")
    a("s_mov_b32 s35, 0x33ffff")
    a("s_mov_b32 s36, 0x440000")
    a("s_mov_b32 s37, 0x440000")
    a(f"v_and_b32 v{vT0}, 31, v{vLane}")
    a(f"v_lshrrev_b32 v{vT1}, 5, v{vLane}")
    a(f"v_lshlrev_b32 v{vK2o}, 3, v{vT0}")
    a(f"v_lshl_add_u32 v{vK1o}, v{vT1}, 9, v{vK2o}")
    a(f"v_lshlrev_b32 v{vVo}, 4, v{vLane}")
    a(f"s_mul_i32 s26, s{sHead}, 81920")
    a(f"s_lshl_b32 s27, s{sQb}, 1")
    a(f"s_add_u32 s27, s27, s{sQg}")
    a("s_mul_i32 s27, s27, 5120")
    a("s_add_u32 s27, s27, s26")
    a("s_add_u32 s28, s27, 2560")
    a(f"s_mul_i32 s29, s{sKq}, 20480")
    a("s_add_u32 s29, s29, s26")
    a(f"s_add_u32 s{sKbase}, s29, {OFF_K}")
    a(f"s_lshl_b32 s29, s{sHead}, 17")
    a(f"s_lshl_b32 s30, s{sKq}, 15")
    a("s_add_u32 s29, s29, s30")
    a(f"s_add_u32 s{sVbase}, s29, {OFF_V}")
    for st in range(2):
        a(f"v_mov_b32 v{K2(st)}, 0x3f803f80")
        a(f"v_mov_b32 v{K2(st)+1}, 0x3f80")
        for r in range(8):
            a(f"v_mov_b32 v{V1(st)+r}, 0")
    for i in range(4):
        a(f"v_mov_b32 v{Q2[i]}, 0")
        a(f"v_mov_b32 v{Q2[i]+1}, 0")
    a("s_mov_b64 exec, s[36:37]")
    for st in range(2):
        for r in range(8):
            a(f"v_mov_b32 v{V1(st)+r}, 0x3f803f80")
    a("s_mov_b64 exec, -1")
    a("s_waitcnt lgkmcnt(0)")
    make_srd(a, sWS, 24, WS_BYTES)
    def loadk(s):
        a(f"buffer_load_dwordx2 {vr(K1(s),2)}, v{vK1o}, s[4:7], s{sKoff} offen")
        a(f"buffer_load_dwordx2 {vr(K1(s)+2,2)}, v{vK1o}, s[4:7], s{sKoff} offen offset:256")
        a("s_mov_b64 exec, s[32:33]")
        a(f"buffer_load_dwordx2 {vr(K2(s),2)}, v{vK2o}, s[4:7], s{sKoff} offen offset:1024")
    def loads(s):
        loadk(s)
        a("s_mov_b64 exec, s[34:35]")
        a(f"buffer_load_dwordx4 {vr(V1(s),4)}, v{vVo}, s[4:7], s{sVoff} offen")
        a(f"buffer_load_dwordx4 {vr(V2(s),4)}, v{vVo}, s[4:7], s{sVoff} offen offset:1024")
        a("s_mov_b64 exec, -1")
        a(f"s_add_u32 s{sKoff}, s{sKoff}, 1280")
        a(f"s_add_u32 s{sVoff}, s{sVoff}, 2048")
    a(f"s_mov_b32 s{sKoff}, s{sKbase}")
    a(f"s_mov_b32 s{sVoff}, s{sVbase}")
    loads(0)
    for i in range(4):
        sb_, off = ("s27", 1280*i) if i < 2 else ("s28", 1280*(i-2))
        a(f"buffer_load_dwordx2 {vr(Q1[i],2)}, v{vK1o}, s[4:7], {sb_} offen offset:{off}")
        a(f"buffer_load_dwordx2 {vr(Q1[i]+2,2)}, v{vK1o}, s[4:7], {sb_} offen offset:{off+256}")
    a("s_mov_b64 exec, s[32:33]")
    for i in range(4):
        sb_, off = ("s27", 1280*i) if i < 2 else ("s28", 1280*(i-2))
        a(f"buffer_load_dwordx2 {vr(Q2[i],2)}, v{vK2o}, s[4:7], {sb_} offen offset:{off+1024}")
    a("s_mov_b64 exec, -1")
    for i in range(4):
        a(f"v_mov_b32 v{vM[i]}, 0xff800000")
    a(f"s_mov_b32 s{sNmax}, 1")
    a(f"s_mov_b32 s{sCnt}, 0")
    if ffn2:
        a("s_barrier")
    a("s_waitcnt vmcnt(0)")
    a(f"s_branch {name}_maxbody")
    a.label(f"{name}_maxpass")
    a(f"s_mov_b64 exec, s[{sHi}:{sHi+1}]")
    for i in range(4):
        a(f"v_mov_b32 v{Q2[i]}, 0")
        a(f"v_mov_b32 v{Q2[i]+1}, 0")
    a("s_mov_b64 exec, -1")
    for i in range(4):
        a(f"v_mov_b32 v{vM[i]}, 0xff800000")
    a(f"s_add_u32 s{sKoff}, s{sKbase}, {15*1280}")
    a(f"s_mov_b32 s{sCnt}, 0")
    a.label(f"{name}_maxloop")
    loadk(0)
    a("s_mov_b64 exec, -1")
    a(f"s_sub_u32 s{sKoff}, s{sKoff}, 1280")
    a("s_waitcnt vmcnt(0)")
    a.label(f"{name}_maxbody")
    for i in range(4):
        sb = O[i]
        a(f"v_mfma_f32_32x32x16_bf16 {vr(sb,16)}, {vr(K1(0),4)}, {vr(Q1[i],4)}, 0")
        a(f"v_mfma_f32_32x32x8_bf16 {vr(sb,16)}, {vr(K2(0),2)}, {vr(Q2[i],2)}, {vr(sb,16)}")
    a("s_nop 7")
    for i in range(4):
        sb = O[i]
        if i == 3: a("s_nop 7")
        for r in range(0, 16, 2):
            a(f"v_max3_f32 v{vM[i]}, v{sb+r}, v{sb+r+1}, v{vM[i]}")
    a(f"s_add_u32 s{sCnt}, s{sCnt}, 1")
    a(f"s_cmp_lt_u32 s{sCnt}, s{sNmax}")
    a(f"s_cbranch_scc1 {name}_maxloop")
    a(f"s_cmp_eq_u32 s{sNmax}, 1")
    a(f"s_cbranch_scc1 {name}_haveV")
    a(f"s_mov_b32 s{sKoff}, s{sKbase}")
    a(f"s_mov_b32 s{sVoff}, s{sVbase}")
    loads(0)
    a.label(f"{name}_haveV")
    TT = Sb[0]
    for i in range(4):
        a(f"v_mov_b32 v{TT+i}, v{vM[i]}")
    a("s_nop 1")
    for i in range(4):
        a(f"v_permlane32_swap_b32 v{TT+i}, v{vM[i]}")
    a("s_nop 1")
    for i in range(4):
        a(f"v_max_f32 v{vM[i]}, v{vM[i]}, v{TT+i}")
    for i in range(4):
        t0, t1, t2 = TT+4+3*i, TT+5+3*i, TT+6+3*i
        a(f"v_sub_f32 v{t0}, 0, v{vM[i]}")
        a(f"v_and_b32 v{t1}, 0xffff0000, v{t0}")
        a(f"v_sub_f32 v{t0}, v{t0}, v{t1}")
        a(f"v_and_b32 v{t2}, 0xffff0000, v{t0}")
        a(f"v_sub_f32 v{t0}, v{t0}, v{t2}")
        a(f"v_lshrrev_b32 v{t1}, 16, v{t1}")
        a(f"v_or_b32 v{t1}, v{t1}, v{t2}")
        a(f"v_lshrrev_b32 v{t0}, 16, v{t0}")
    a(f"s_mov_b64 exec, s[{sHi}:{sHi+1}]")
    for i in range(4):
        a(f"v_mov_b32 v{Q2[i]}, v{TT+5+3*i}")
        a(f"v_mov_b32 v{Q2[i]+1}, v{TT+4+3*i}")
    a("s_mov_b64 exec, s[34:35]")
    for r in range(4):
        a(f"v_mov_b32 v{V2(1)+r}, 0")
    a("s_mov_b64 exec, -1")
    a("s_waitcnt vmcnt(0)")
    def qk_a(s, q, sb): a(f"v_mfma_f32_32x32x16_bf16 {vr(sb,16)}, {vr(K1(s),4)}, {vr(Q1[q],4)}, 0")
    def qk_b(s, q, sb): a(f"v_mfma_f32_32x32x8_bf16 {vr(sb,16)}, {vr(K2(s),2)}, {vr(Q2[q],2)}, {vr(sb,16)}")
    def pv(s, q, sb, j):
        vv = V1(s) if j == 0 else V2(s)
        a(f"v_mfma_f32_32x32x16_bf16 {vr(O[q],16)}, {vr(vv,4)}, {vr(sb+8*j,4)}, {vr(O[q],16)}")
    def ex(sb, r): a(f"v_exp_f32 v{sb+r}, v{sb+r}")
    def cv(sb, p):
        base = sb + 8*(p//4)
        a(f"v_cvt_pk_bf16_f32 v{base + p%4}, v{sb+2*p}, v{sb+2*p+1}")
    qk_a(0, 0, Sb[0]); qk_b(0, 0, Sb[0])
    for i in range(4):
        for r in range(16):
            a(f"v_mov_b32 v{O[i]+r}, 0")
    for r in range(4):
        a(f"v_mov_b32 v{Sb[1]+8+r}, 0")
    a(f"s_mov_b32 s{sCnt}, 0")
    if "noprio" not in AEXP: a("s_setprio 2")
    if stamps: a("s_memtime s[42:43]\ns_waitcnt lgkmcnt(0)")
    a.label(f"{name}_loop")
    if "noprio" not in AEXP:
        for cval, pr in ((5, 1), (7, 0)):
            a(f"s_cmp_lg_u32 s{sCnt}, {cval}")
            a(f"s_cbranch_scc1 {name}_np{cval}")
            a(f"s_setprio {pr}")
            a.label(f"{name}_np{cval}")
    for t in range(2):
        for q in range(4):
            u = 4*t + q
            sb = Sb[u % 2]; so = Sb[(u+1) % 2]
            ps, pq = (t, q-1) if q > 0 else (1-t, 3)
            ns, nq = (t, q+1) if q < 3 else (1-t, 0)
            ex(sb, 0); ex(sb, 1)
            pv(ps, pq, so, 1)
            if q == 0:
                loads(1-t)
            for r in range(2, 6): ex(sb, r)
            if q == 3:
                a("s_waitcnt vmcnt(0)")
            qk_a(ns, nq, so)
            ex(sb, 6); ex(sb, 7)
            for p in range(4): cv(sb, p)
            qk_b(ns, nq, so)
            for r in range(8, 12): ex(sb, r)
            pv(t, q, sb, 0)
            for r in range(12, 16): ex(sb, r)
            for p in range(4, 8): cv(sb, p)
    a(f"s_add_u32 s{sCnt}, s{sCnt}, 1")
    a(f"s_cmp_lt_u32 s{sCnt}, 8")
    a(f"s_cbranch_scc1 {name}_loop")
    if stamps: a("s_memtime s[44:45]\ns_waitcnt lgkmcnt(0)")
    a("s_nop 1")
    pv(1, 3, Sb[1], 1)
    a("s_waitcnt vmcnt(0)")
    a("s_mov_b32 s26, 0x5d800000")
    a("s_nop 13")
    a(f"v_cmp_nlt_f32 s[28:29], v{O[0]+10}, s26")
    a(f"v_cmp_nlt_f32 s[30:31], v{O[1]+10}, s26")
    a("s_or_b64 s[28:29], s[28:29], s[30:31]")
    a(f"v_cmp_nlt_f32 s[30:31], v{O[2]+10}, s26")
    a("s_or_b64 s[28:29], s[28:29], s[30:31]")
    a(f"v_cmp_nlt_f32 s[30:31], v{O[3]+10}, s26")
    a("s_or_b64 s[28:29], s[28:29], s[30:31]")
    a("s_cmp_eq_u64 s[28:29], 0")
    a(f"s_cbranch_scc1 {name}_combine")
    a(f"s_cmp_eq_u32 s{sNmax}, 16")
    a(f"s_cbranch_scc1 {name}_combine")
    a(f"s_mov_b32 s{sNmax}, 16")
    a(f"s_branch {name}_maxpass")
    a.label(f"{name}_combine")
    LB = 0
    if ffn2:
        if ring <= 3:
            LB = 61568
        else:
            a("s_barrier")
    for i in range(4):
        a(f"v_mov_b32 v{O[i]+11}, v{vM[i]}")
    a(f"s_mul_i32 s26, s{sWave}, 12288")
    if LB: a(f"s_add_u32 s26, s26, {LB}")
    a(f"v_add_u32 v{vT0}, s26, v{vVo}")
    for i in range(4):
        for c in range(3):
            a(f"ds_write_b128 v{vT0}, {vr(O[i]+4*c,4)} offset:{(i*3+c)*1024}")
    a(f"s_mul_i32 s26, s{sQg}, 12288")
    a(f"s_mul_i32 s27, s{sKq}, 3072")
    a("s_add_u32 s26, s26, s27")
    if LB: a(f"s_add_u32 s26, s26, {LB}")
    a(f"v_add_u32 v{vT0}, s26, v{vVo}")
    a(f"v_add_u32 v{vT1}, 49152, v{vT0}")
    a("s_waitcnt lgkmcnt(0)")
    a("s_barrier")
    P = [O[0], O[1], O[2], O[3]]
    for k in range(4):
        for c in range(3):
            a(f"ds_read_b128 {vr(P[k]+4*c,4)}, v{vT0 if k < 2 else vT1} offset:{(k%2)*24576 + c*1024}")
    AD = Sb[0]
    a(f"v_and_b32 v{AD+8}, 31, v{vLane}")
    a(f"v_lshrrev_b32 v{AD+9}, 5, v{vLane}")
    a(f"v_lshlrev_b32 v{AD+8}, 4, v{AD+8}")
    a(f"v_mul_u32_u24 v{AD+9}, 10, v{AD+9}")
    a(f"s_mul_i32 s27, s{sHead}, 20")
    a(f"v_add_u32 v{AD+9}, s27, v{AD+9}")
    a(f"s_lshl_b32 s26, s{sQb}, 3")
    a(f"s_lshl_b32 s27, s{sQg}, 2")
    a("s_add_u32 s26, s26, s27")
    a(f"s_add_u32 s26, s26, s{sKq}")
    a("s_mul_i32 s26, s26, 40960")
    a(f"s_add_u32 s26, s26, {OFF_O}")
    for p in range(5):
        a(f"v_add_u32 v{AD+p}, {2*p}, v{AD+9}")
        a(f"v_lshrrev_b32 v{vT2}, 3, v{AD+p}")
        a(f"v_and_b32 v{AD+p}, 7, v{AD+p}")
        a(f"v_lshl_add_u32 v{AD+p}, v{AD+p}, 1, v{AD+8}")
        a(f"v_lshl_add_u32 v{AD+p}, v{vT2}, 9, v{AD+p}")
    a("s_waitcnt lgkmcnt(0)")
    a(f"v_max_f32 v{vT1}, v{P[0]+11}, v{P[1]+11}")
    a(f"v_max3_f32 v{vT1}, v{P[2]+11}, v{P[3]+11}, v{vT1}")
    for k in range(4):
        a(f"v_sub_f32 v{P[k]+11}, v{P[k]+11}, v{vT1}")
    for k in range(4):
        a(f"v_exp_f32 v{P[k]+11}, v{P[k]+11}")
    a("s_nop 0")
    for r in range(11):
        a(f"v_mul_f32 v{P[0]+r}, v{P[0]+r}, v{P[0]+11}")
    for k in range(1, 4):
        for r in range(11):
            a(f"v_fma_f32 v{P[0]+r}, v{P[k]+r}, v{P[k]+11}, v{P[0]+r}")
    a(f"v_rcp_f32 v{vT1}, v{P[0]+10}")
    a("s_nop 0")
    for r in range(10):
        a(f"v_mul_f32 v{P[0]+r}, v{P[0]+r}, v{vT1}")
    for p in range(5):
        a(f"v_cvt_pk_bf16_f32 v{P[1]+p}, v{P[0]+2*p}, v{P[0]+2*p+1}")
    for p in range(5):
        a(f"buffer_store_dword v{P[1]+p}, v{AD+p}, s[4:7], s26 offen")
    if stamps:
        a("s_memtime s[46:47]\ns_memrealtime s[50:51]\ns_waitcnt lgkmcnt(0)\ns_sub_u32 s52, s50, s48")
        a("s_sub_u32 s42, s42, s40\ns_sub_u32 s44, s44, s40\ns_sub_u32 s46, s46, s40")
        a("v_mov_b32 v8, s52\nv_mov_b32 v9, s42\nv_mov_b32 v10, s44\nv_mov_b32 v11, s46")
        a(f"s_lshl_b32 s26, s2, 3\ns_add_u32 s26, s26, s{sWave}\ns_lshl_b32 s26, s26, 4\ns_add_u32 s26, s26, {24<<20}")
        a("v_mov_b32 v12, 0")
        a("s_mov_b64 exec, 1")
        a("buffer_store_dwordx4 v[8:11], v12, s[4:7], s26 offen")
    a.label(f"{name}_end")
    a("s_endpgm")
    lds = 98304 + LB
    if ffn2:
        a.label(f"{name}_ffn2")
        a("s_waitcnt lgkmcnt(0)")
        lds = max(lds, gen_ffn2_waves(a, name, ring))
    return NV, lds
```

```python
from genlib import *
import struct, os
EXP = os.environ.get("P1EXP", "")
def f2u(x): return struct.unpack("<I", struct.pack("<f", x))[0]

CSCALE = (20 ** -0.5) * 1.4426950408889634
STAGE = 49152
SCR = 3*STAGE
L_ROW, L_CS, L_B1, L_TS = 4096, 4608, 5120, 5632
OFF_RST = 23 << 20
OFF_CSP = (23 << 20) + 65536

def dpp_reduce(a, regs):
    for mod in ("row_shr:1", "row_shr:2", "row_shr:4", "row_shr:8"):
        a("s_nop 1")
        for r in regs:
            a(f"v_add_f32_dpp v{r}, v{r}, v{r} {mod} row_mask:0xf bank_mask:0xf bound_ctrl:0")
    a("s_nop 1")
    for r in regs:
        a(f"v_add_f32_dpp v{r}, v{r}, v{r} row_bcast:15 row_mask:0xa bank_mask:0xf")
    a("s_nop 1")
    for r in regs:
        a(f"v_add_f32_dpp v{r}, v{r}, v{r} row_bcast:31 row_mask:0xc bank_mask:0xf")

def gen_p1(a, name="p1_kernel", stamps=False):
    kernel_header(a, name)
    sX, sW, sWS, sB1, sDbg = 4, 8, 12, 16, 76
    sWave, sRb, sCb, sXk, sWk = 20, 21, 22, 24, 25
    sM0x, sM0w = 27, 28
    sCol, sTok, sPar, sRot = 33, 34, 35, 23
    sT = [29, 30, 31, 32]
    vCs = 226
    sLo = 44
    vLane, vR, vH = 1, 2, 3
    vXd = [4, 5, 6, 7]
    vWd = [8, 9]
    vXa = [[10+4*s+j for j in range(4)] for s in range(3)]
    vWa = [[22+4*s+t for t in range(4)] for s in range(3)]
    vT = list(range(34, 48))
    XF = [48, 52]
    WF = [[56 + 4*t for t in range(4)], [72 + 4*t for t in range(4)]]
    ACC = [88 + 16*t for t in range(4)]
    EP = 152
    SL = 152
    vRS = 208
    vCP = 210
    NV = 228
    t0, t1, t2, t3 = vT[:4]

    a("s_cmp_ge_u32 s2, 256")
    a(f"s_cbranch_scc1 {name}_end")
    a(f"s_load_dwordx4 s[36:39], s[0:1], {KA['x']}")
    a(f"s_load_dwordx4 s[40:43], s[0:1], {KA['w1']}")
    a(f"s_load_dwordx4 s[72:75], s[0:1], {KA['dbg']}")
    if stamps: a("s_memtime s[60:61]\ns_memrealtime s[68:69]")
    a("v_lshrrev_b32 v4, 6, v0")
    a(f"v_and_b32 v{vLane}, 63, v0")
    a("s_and_b32 s48, s2, 7")
    a(f"v_readfirstlane_b32 s{sWave}, v4")
    a("s_lshr_b32 s49, s2, 3")
    a("s_and_b32 s50, s48, 1")
    a("s_lshr_b32 s51, s48, 1")
    a("s_and_b32 s52, s49, 3")
    a("s_lshl_b32 s50, s50, 2")
    a(f"s_add_u32 s{sRb}, s50, s52")
    a("s_lshr_b32 s52, s49, 2")
    a("s_lshl_b32 s51, s51, 3")
    a(f"s_add_u32 s{sCb}, s51, s52")
    a(f"v_and_b32 v{vR}, 31, v{vLane}")
    a(f"v_lshrrev_b32 v{vH}, 5, v{vLane}")
    a(f"s_mov_b32 s{sLo}, -1")
    a(f"s_mov_b32 s{sLo+1}, 0")
    a(f"s_lshl_b32 s{sTok}, s{sRb}, 8")
    a(f"s_lshl_b32 s48, s{sWave}, 5")
    a(f"s_add_u32 s{sTok}, s{sTok}, s48")
    a("s_waitcnt lgkmcnt(0)")
    make_srd(a, sX, 36, S*D*2)
    make_srd(a, sWS, 74, WS_BYTES)
    make_srd(a, sB1, 42, F*2)
    make_srd(a, sDbg, 72, 256)
    a(f"v_lshrrev_b32 v{t0}, 3, v{vLane}")
    a(f"v_and_b32 v{t1}, 7, v{vLane}")
    for n in range(4):
        a(f"v_add_u32 v{t2}, {8*n}, v{t0}")
        a(f"v_lshrrev_b32 v{t3}, 1, v{t2}")
        a(f"v_and_b32 v{t3}, 7, v{t3}")
        a(f"v_xor_b32 v{t3}, v{t3}, v{t1}")
        a(f"v_mul_u32_u24 v{t2}, 1280, v{t2}")
        a(f"v_lshl_add_u32 v{vXd[n]}, v{t3}, 4, v{t2}")
    a(f"s_mul_i32 s{sXk}, s{sTok}, 1280")
    a(f"s_lshl_b32 s{sM0x}, s{sWave}, 12")
    a(f"s_cmp_eq_u32 s{sCb}, 31")
    a(f"s_cbranch_scc1 {name}_S")
    a(f"s_cmp_ge_u32 s{sCb}, 15")
    a(f"s_cbranch_scc1 {name}_F")
    make_srd(a, sW, 38, D*3*D*2)
    a(f"s_cmp_ge_u32 s{sCb}, 10")
    a(f"s_cbranch_scc1 {name}_V")
    body(a, name, "QK", locals())
    a.label(f"{name}_V")
    body(a, name, "V", locals())
    a.label(f"{name}_F")
    make_srd(a, sW, 40, D*F*2)
    body(a, name, "F", locals())
    a.label(f"{name}_S")
    XL = 48
    a(f"v_lshrrev_b32 v{t0}, 4, v{vLane}")
    a(f"v_and_b32 v{t1}, 15, v{vLane}")
    a(f"v_mul_u32_u24 v{t2}, 1280, v{t0}")
    a(f"v_lshl_add_u32 v{t2}, v{t1}, 4, v{t2}")
    for gq in range(8):
        for i in range(5):
            a(f"buffer_load_dwordx4 {vr(XL+20*gq+4*i,4)}, v{t2}, s[{sX}:{sX+3}], s{sXk} offen offset:{256*i}")
        a(f"s_add_u32 s{sXk}, s{sXk}, 5120")
    AC = 208
    for gq in range(8):
        a(f"s_waitcnt vmcnt({5*(7-gq)})")
        for i in range(20):
            x = XL + 20*gq + i
            a(f"v_lshlrev_b32 v{AC+4}, 16, v{x}")
            a(f"v_and_b32 v{AC+5}, 0xffff0000, v{x}")
            if i == 0:
                a(f"v_pk_mul_f32 {vr(AC+2,2)}, {vr(AC+4,2)}, {vr(AC+4,2)}")
                a(f"v_mov_b32 v{AC}, v{AC+4}")
                a(f"v_mov_b32 v{AC+1}, v{AC+5}")
            else:
                a(f"v_pk_add_f32 {vr(AC,2)}, {vr(AC,2)}, {vr(AC+4,2)}")
                a(f"v_pk_fma_f32 {vr(AC+2,2)}, {vr(AC+4,2)}, {vr(AC+4,2)}, {vr(AC+2,2)}")
        a(f"v_add_f32 v{10+2*gq}, v{AC}, v{AC+1}")
        a(f"v_add_f32 v{11+2*gq}, v{AC+2}, v{AC+3}")
    for mod in ("row_shr:1", "row_shr:2", "row_shr:4", "row_shr:8"):
        a("s_nop 1")
        for r in range(10, 26):
            a(f"v_add_f32_dpp v{r}, v{r}, v{r} {mod} row_mask:0xf bank_mask:0xf bound_ctrl:0")
    a(f"s_lshl_b32 s48, s{sTok}, 3")
    a(f"s_add_u32 s48, s48, {OFF_RST}")
    a(f"v_lshlrev_b32 v{t0}, 3, v{t0}")
    a("s_mov_b32 s50, 0x80008000")
    a("s_mov_b32 s51, 0x80008000")
    a("s_mov_b64 exec, s[50:51]")
    for gq in range(8):
        a(f"buffer_store_dwordx2 {vr(10+2*gq,2)}, v{t0}, s[{sWS}:{sWS+3}], s48 offen offset:{32*gq} sc0 sc1")
    a("s_mov_b64 exec, -1")
    a("s_waitcnt vmcnt(0)")
    a("s_barrier")
    a(f"s_cmp_lg_u32 s{sWave}, 0")
    a(f"s_cbranch_scc1 {name}_end")
    a("s_mov_b64 exec, 1")
    a(f"v_mov_b32 v{t0}, 1")
    a(f"v_mov_b32 v{t1}, 0")
    a(f"s_lshl_b32 s48, s{sRb}, 5")
    a(f"buffer_store_dword v{t0}, v{t1}, s[{sDbg}:{sDbg+3}], s48 offen sc0 sc1")
    a.label(f"{name}_end")
    a("s_endpgm")
    return NV, SCR + 7680

def row_stats(a, g):
    SL = g.SL; T = SL + 16
    for i in range(5):
        a(f"v_and_b32 v{T+2*i}, 0xffff0000, v{SL+i}")
        a(f"v_lshlrev_b32 v{T+2*i+1}, 16, v{SL+i}")
    s, q = T+10, T+11
    a(f"v_add_f32 v{s}, v{T}, v{T+1}")
    a(f"v_mul_f32 v{q}, v{T}, v{T}")
    a(f"v_fmac_f32 v{q}, v{T+1}, v{T+1}")
    for i in range(2, 10):
        a(f"v_add_f32 v{s}, v{s}, v{T+i}")
        a(f"v_fmac_f32 v{q}, v{T+i}, v{T+i}")
    dpp_reduce(a, [s, q])
    a(f"s_lshl_b32 s48, s{g.sWave}, 3")
    a(f"v_mov_b32 v{T}, s48")
    a(f"v_add_u32 v{T}, {SCR+L_ROW}, v{T}")
    a("s_mov_b32 s48, 0")
    a("s_mov_b32 s49, 0x80000000")
    a("s_mov_b64 exec, s[48:49]")
    a(f"ds_write_b64 v{T}, {vr(s,2)}")
    a("s_mov_b64 exec, -1")

def publish_rows(a, g):
    T = g.SL + 16
    a(f"v_lshlrev_b32 v{T}, 3, v{g.vLane}")
    a(f"v_add_u32 v{T+1}, {SCR+L_ROW}, v{T}")
    a("s_mov_b64 exec, 0xff")
    a(f"ds_read_b64 {vr(T+2,2)}, v{T+1}")
    a(f"s_lshl_b32 s48, s{g.sRb}, 11")
    a(f"s_lshl_b32 s49, s{g.sCb}, 6")
    a("s_add_u32 s48, s48, s49")
    a(f"s_add_u32 s48, s48, {OFF_RST}")
    a("s_waitcnt lgkmcnt(0)")
    a(f"buffer_store_dwordx2 {vr(T+2,2)}, v{T}, s[{g.sWS}:{g.sWS+3}], s48 offen sc0 sc1")
    a("s_mov_b64 exec, -1")

def signal(a, g, cols):
    T = g.SL + 16
    a("s_mov_b64 exec, 1")
    a(f"v_mov_b32 v{T}, 1")
    a(f"v_mov_b32 v{T+1}, 0")
    a(f"s_lshl_b32 s48, s{g.sRb}, 2")
    a(f"buffer_atomic_add v{T}, v{T+1}, s[{g.sDbg}:{g.sDbg+3}], s48 offen")
    if cols:
        a(f"s_lshl_b32 s48, s{g.sCb}, 2")
        a(f"buffer_atomic_add v{T}, v{T+1}, s[{g.sDbg}:{g.sDbg+3}], s48 offen offset:32")
    a("s_mov_b64 exec, -1")

def body(a, name, typ, L):
    g = type("G", (), L)
    NT = 3 if typ == "F" else 4
    rowb = 3072 if typ == "F" else 3840
    vT = g.vT; t0, t1, t2, t3, t4, t5 = vT[:6]
    vLane, vR, vH = g.vLane, g.vR, g.vH
    sWave = g.sWave; SL = g.SL
    if typ == "F":
        a(f"s_sub_u32 s48, s{g.sCb}, 15")
        a(f"s_mul_i32 s{g.sCol}, s48, 96")
    else:
        a(f"s_lshl_b32 s{g.sCol}, s{g.sCb}, 7")
    if typ == "F":
        a(f"s_mul_i32 s{g.sPar}, s{sWave}, 43")
        a(f"s_lshr_b32 s{g.sPar}, s{g.sPar}, 7")
        a(f"s_mul_i32 s48, s{g.sPar}, 3")
        a(f"s_sub_u32 s{g.sRot}, s{sWave}, s48")
    else:
        a(f"s_lshr_b32 s{g.sPar}, s{sWave}, 2")
        a(f"s_and_b32 s{g.sRot}, s{sWave}, 3")
    for t in range(NT):
        a(f"s_add_u32 s{g.sT[t]}, s{g.sRot}, {t}")
        a(f"s_cmp_ge_u32 s{g.sT[t]}, {NT}")
        a(f"s_cselect_b32 s48, {NT}, 0")
        a(f"s_sub_u32 s{g.sT[t]}, s{g.sT[t]}, s48")
    if typ == "F":
        a(f"s_lshl_b32 s48, s{g.sCol}, 1")
        a(f"v_lshlrev_b32 v{t0}, 2, v{vLane}")
        a(f"buffer_load_dword v{SL}, v{t0}, s[{g.sB1}:{g.sB1+3}], s48 offen")
    if NT == 4:
        a(f"v_lshrrev_b32 v{t0}, 4, v{vLane}")
        a(f"v_bfe_u32 v{t1}, v{vLane}, 2, 2")
        a(f"v_xor_b32 v{t1}, v{t1}, v{t0}")
        a(f"v_and_b32 v{t2}, 3, v{vLane}")
        a(f"v_mul_u32_u24 v{t0}, {rowb}, v{t0}")
        a(f"v_lshl_add_u32 v{t0}, v{t1}, 6, v{t0}")
        a(f"v_lshl_add_u32 v{g.vWd[0]}, v{t2}, 4, v{t0}")
        a(f"v_add_u32 v{g.vWd[1]}, {4*rowb}, v{g.vWd[0]}")
        a(f"s_lshl_b32 s{g.sM0w}, s{sWave}, 11")
    else:
        for n in range(2):
            a(f"v_add_u32 v{t0}, {64*n}, v{vLane}")
            a(f"v_mul_u32_u24 v{t1}, 171, v{t0}")
            a(f"v_lshrrev_b32 v{t1}, 11, v{t1}")
            a(f"v_mul_u32_u24 v{t2}, 12, v{t1}")
            a(f"v_sub_u32 v{t2}, v{t0}, v{t2}")
            a(f"v_mul_u32_u24 v{t1}, {rowb}, v{t1}")
            a(f"v_lshl_add_u32 v{g.vWd[n]}, v{t2}, 4, v{t1}")
        a(f"s_mul_i32 s{g.sM0w}, s{sWave}, 1536")
    a(f"s_add_u32 s{g.sM0w}, s{g.sM0w}, 32768")
    a(f"s_mul_i32 s{g.sWk}, s{sWave}, {8*rowb}")
    a(f"s_lshl_b32 s48, s{g.sCol}, 1")
    a(f"s_add_u32 s{g.sWk}, s{g.sWk}, s48")

    ndma = 6
    def dma_m0(c, n):
        st = (c % 3) * STAGE
        if n < 4: a(f"s_add_u32 m0, s{g.sM0x}, {st + n*1024}")
        else: a(f"s_add_u32 m0, s{g.sM0w}, {st + (n-4)*1024}")
    def dma_ld(c, n):
        if n < 4:
            a(f"buffer_load_dwordx4 v{g.vXd[n]}, s[{g.sX}:{g.sX+3}], s{g.sXk} offen lds")
            if n == 3: a(f"s_add_u32 s{g.sXk}, s{g.sXk}, 128")
        else:
            if NT == 3 and n == 5: a(f"s_mov_b64 exec, s[{g.sLo}:{g.sLo+1}]")
            a(f"buffer_load_dwordx4 v{g.vWd[n-4]}, s[{g.sW}:{g.sW+3}], s{g.sWk} offen lds")
            if NT == 3 and n == 5: a("s_mov_b64 exec, -1")
            if n == 5: a(f"s_add_u32 s{g.sWk}, s{g.sWk}, {64*rowb}")
    def dma(c):
        for n in range(6):
            dma_m0(c, n); a("s_nop 0"); dma_ld(c, n)
    dma(0); dma(1); dma(2)
    wstride = 256 if NT == 4 else 192
    a(f"v_lshrrev_b32 v{t0}, 1, v{vR}")
    a(f"v_and_b32 v{t0}, 7, v{t0}")
    a(f"s_lshl_b32 s48, s{sWave}, 12")
    a(f"v_lshlrev_b32 v{t1}, 7, v{vR}")
    a(f"v_add_u32 v{t1}, s48, v{t1}")
    for j in range(4):
        a(f"v_add_u32 v{t2}, {2*j}, v{vH}")
        a(f"v_xor_b32 v{t2}, v{t2}, v{t0}")
        a(f"v_lshl_add_u32 v{g.vXa[0][j]}, v{t2}, 4, v{t1}")
        for s in (1, 2): a(f"v_add_u32 v{g.vXa[s][j]}, {s*STAGE}, v{g.vXa[0][j]}")
    a(f"v_bfe_u32 v{t0}, v{vLane}, 2, 2")
    a(f"v_and_b32 v{t1}, 3, v{vLane}")
    a(f"v_bfe_u32 v{t2}, v{vLane}, 4, 1")
    a(f"v_lshl_add_u32 v{t3}, v{vH}, 3, v{t0}")
    a(f"v_mul_u32_u24 v{t3}, {wstride}, v{t3}")
    a(f"v_lshl_add_u32 v{t3}, v{t2}, 5, v{t3}")
    a(f"v_lshl_add_u32 v{t3}, v{t1}, 3, v{t3}")
    a(f"v_add_u32 v{t3}, 32768, v{t3}")
    for t in range(NT):
        if NT == 4:
            a(f"v_xor_b32 v{t4}, s{g.sT[t]}, v{t0}")
            a(f"v_lshl_add_u32 v{g.vWa[0][t]}, v{t4}, 6, v{t3}")
        else:
            a(f"s_lshl_b32 s48, s{g.sT[t]}, 6")
            a(f"v_add_u32 v{g.vWa[0][t]}, s48, v{t3}")
        for s in (1, 2): a(f"v_add_u32 v{g.vWa[s][t]}, {s*STAGE}, v{g.vWa[0][t]}")
    for t in range(NT):
        for r in range(16):
            a(f"v_mov_b32 v{g.ACC[t]+r}, 0")
    T = SL + 16
    a(f"v_mov_b32 v{g.vCs}, 0")
    a(f"v_mov_b32 v{g.vCs+1}, 0")
    a(f"v_lshlrev_b32 v{T}, 3, v{vLane}")
    a(f"v_add_u32 v{T}, {SCR}, v{T}")
    a(f"ds_write_b64 v{T}, {vr(g.vCs,2)} offset:{L_CS}")
    if typ == "F":
        a(f"s_waitcnt vmcnt({3*ndma})")
        a(f"v_and_b32 v{T+3}, 0xffff0000, v{SL}")
        a(f"v_lshlrev_b32 v{T+2}, 16, v{SL}")
        a(f"ds_write_b64 v{T}, {vr(T+2,2)} offset:{L_B1}")
    cnt = [0]

    nrd = 1 + 2*NT
    def reads(c, j):
        if "noread" in EXP: return
        b = j % 2; s = c % 3
        a(f"ds_read_b128 {vr(g.XF[b],4)}, v{g.vXa[s][j]}")
        for t in range(NT):
            for rd in range(2):
                a(f"ds_read_b64_tr_b16 {vr(g.WF[b][t]+2*rd,2)}, v{g.vWa[s][t]} offset:{(16*j+4*rd)*wstride}")
    def mfmas(j, dm=None):
        b = j % 2
        for t in range(NT):
            k = None
            if dm and t in (0, 2): k = dm[1][t//2]
            if k is not None: dma_m0(dm[0], k)
            if "nomfma" in EXP: a("s_nop 0")
            elif typ == "V":
                a(f"v_mfma_f32_32x32x16_bf16 {vr(g.ACC[t],16)}, {vr(g.XF[b],4)}, {vr(g.WF[b][t],4)}, {vr(g.ACC[t],16)}")
            else:
                a(f"v_mfma_f32_32x32x16_bf16 {vr(g.ACC[t],16)}, {vr(g.WF[b][t],4)}, {vr(g.XF[b],4)}, {vr(g.ACC[t],16)}")
            if k is not None: dma_ld(dm[0], k)
            if t == 1 and "nocs" not in EXP:
                lab = f"{name}_{typ}_cs{cnt[0]}"; cnt[0] += 1
                a(f"s_cmp_lg_u32 s{g.sPar}, {j % 2}")
                a(f"s_cbranch_scc1 {lab}")
                for r in range(4):
                    a(f"v_lshlrev_b32 v{T+4+2*r}, 16, v{g.WF[b][0]+r}")
                    a(f"v_and_b32 v{T+5+2*r}, 0xffff0000, v{g.WF[b][0]+r}")
                for r in range(4):
                    a(f"v_pk_add_f32 {vr(g.vCs,2)}, {vr(g.vCs,2)}, {vr(T+4+2*r,2)}")
                a.label(lab)
    a(f"s_waitcnt vmcnt({2*ndma}) lgkmcnt(0)")
    a("s_barrier")
    if g.stamps: a("s_memtime s[64:65]\ns_waitcnt lgkmcnt(0)")
    reads(0, 0)
    for c in range(10):
        dprev = (c + 2) if (1 <= c and c + 2 <= 9) else None
        for j in range(3):
            reads(c, j+1)
            a(f"s_waitcnt lgkmcnt({nrd})")
            mfmas(j, (dprev, [2+2*j, 3+2*j]) if (dprev is not None and j < 2) else None)
        if c < 9:
            a(f"s_waitcnt vmcnt({ndma if c+2 <= 9 else 0}) lgkmcnt(0)")
            if c == 6:
                a(f"s_cmp_lg_u32 s{sWave}, 0")
                a(f"s_cbranch_scc1 {name}_{typ}_pd")
                a("s_mov_b32 s54, 0")
                a.label(f"{name}_{typ}_pl")
                a(f"v_readfirstlane_b32 s50, v{T+1}")
                a("s_add_u32 s54, s54, 1")
                a("s_cmp_lg_u32 s50, 0")
                a(f"s_cbranch_scc1 {name}_{typ}_pd")
                a("s_cmp_gt_u32 s54, 0x40000")
                a(f"s_cbranch_scc1 {name}_{typ}_pd")
                a(f"buffer_load_dword v{T+1}, v{T}, s[{g.sDbg}:{g.sDbg+3}], s53 offen sc0 sc1")
                a("s_waitcnt vmcnt(0)")
                a(f"s_branch {name}_{typ}_pl")
                a.label(f"{name}_{typ}_pd")
            a("s_barrier")
            if c == 4:
                a(f"v_mov_b32 v{T}, 0")
                a(f"s_lshl_b32 s53, s{g.sRb}, 5")
                a(f"buffer_load_dword v{T+1}, v{T}, s[{g.sDbg}:{g.sDbg+3}], s53 offen sc0 sc1")
            if c == 6:
                a(f"s_lshl_b32 s48, s{g.sTok}, 3")
                a(f"s_add_u32 s48, s48, {OFF_RST}")
                a(f"v_lshlrev_b32 v{T}, 3, v{vR}")
                a(f"buffer_load_dwordx2 {vr(g.vRS,2)}, v{T}, s[{g.sWS}:{g.sWS+3}], s48 offen sc0 sc1")
            reads(c+1, 0)
            mfmas(3, (c+3, [0, 1]) if c + 3 <= 9 else None)
        else:
            a("s_waitcnt lgkmcnt(0)")
            mfmas(3)
    if g.stamps: a("s_memtime s[66:67]\ns_waitcnt lgkmcnt(0)")
    EP = g.EP
    a(f"v_add_f32 v{g.vCs}, v{g.vCs}, v{g.vCs+1}")
    a(f"v_mov_b32 v{g.vCs+1}, v{g.vCs}")
    a(f"s_lshl_b32 s48, s{g.sT[0]}, 7")
    a(f"s_add_u32 s48, s48, {SCR+L_CS}")
    a(f"v_permlane32_swap_b32 v{g.vCs}, v{g.vCs+1}")
    a(f"v_lshl_add_u32 v{t0}, v{vR}, 2, s48")
    a(f"s_mov_b64 exec, s[{g.sLo}:{g.sLo+1}]")
    a(f"v_add_f32 v{g.vCs}, v{g.vCs}, v{g.vCs+1}")
    a(f"ds_add_f32 v{t0}, v{g.vCs}")
    a("s_mov_b64 exec, -1")
    vMean, vVar = g.vRS, g.vRS+1
    vRs, vMr = vT[8], vT[10]
    a(f"v_mul_f32 v{vMean}, {f2u(1.0/640):#x}, v{vMean}")
    a(f"v_mul_f32 v{vVar}, {f2u(1.0/640):#x}, v{vVar}")
    a(f"v_fma_f32 v{vVar}, -v{vMean}, v{vMean}, v{vVar}")
    a(f"v_max_f32 v{vVar}, 0, v{vVar}")
    a(f"v_add_f32 v{t1}, {f2u(1e-5):#x}, v{vVar}")
    a(f"v_rsq_f32 v{vRs}, v{t1}")
    a("s_nop 0")
    if typ == "F":
        a(f"v_mul_f32 v{t1}, v{vRs}, v{vRs}")
        a(f"v_mul_f32 v{t1}, v{t1}, v{vVar}")
        a(f"v_add_f32 v{t1}, {f2u(1e-5):#x}, v{t1}")
        a(f"v_rsq_f32 v{t1}, v{t1}")
        a("s_nop 0")
        a(f"v_mul_f32 v{vRs}, v{vRs}, v{t1}")
    if typ == "QK":
        a(f"s_cmp_lt_u32 s{g.sCb}, 5")
        a(f"s_cselect_b32 s48, {f2u(CSCALE):#x}, 1.0")
        a(f"v_mul_f32 v{vRs}, s48, v{vRs}")
    a(f"v_mul_f32 v{vMr}, v{vMean}, v{vRs}")
    a(f"v_sub_f32 v{vMr}, 0, v{vMr}")
    a(f"v_mov_b32 v{vRs+1}, v{vRs}")
    a(f"v_mov_b32 v{vMr+1}, v{vMr}")
    if typ == "V":
        a(f"s_lshl_b32 s48, s{sWave}, 8")
        a(f"s_add_u32 s48, s48, {SCR+L_TS}")
        a(f"v_lshl_add_u32 v{t1}, v{vR}, 2, s48")
        a(f"ds_write_b32 v{t1}, v{vRs}")
        a(f"ds_write_b32 v{t1}, v{vMr} offset:128")
        RS, MR = EP, EP+16
        a(f"v_lshl_add_u32 v{t1}, v{vH}, 4, s48")
        a("s_waitcnt lgkmcnt(0)")
        a("s_barrier")
        for q in range(4):
            a(f"ds_read_b128 {vr(RS+4*q,4)}, v{t1} offset:{32*q}")
            a(f"ds_read_b128 {vr(MR+4*q,4)}, v{t1} offset:{128+32*q}")
        CSv = EP+32
        a(f"v_lshlrev_b32 v{t2}, 2, v{vR}")
        a(f"v_add_u32 v{t2}, {SCR+L_CS}, v{t2}")
        for t in range(NT):
            a(f"s_lshl_b32 s50, s{g.sT[t]}, 7")
            a(f"v_add_u32 v{t3}, s50, v{t2}")
            a(f"ds_read_b32 v{CSv+2*t}, v{t3}")
        a(f"s_lshl_b32 s49, s{g.sTok}, 6")
        a(f"s_add_u32 s49, s49, {OFF_V}")
        a(f"s_sub_u32 s48, s{g.sCol}, 1280")
        AD = [vT[4], vT[5], vT[6], vT[7]]
        for t in range(NT):
            a(f"s_lshl_b32 s50, s{g.sT[t]}, 5")
            a("s_add_u32 s50, s50, s48")
            a(f"v_add_u32 v{t0}, s50, v{vR}")
            a(f"v_mul_u32_u24 v{t1}, 3277, v{t0}")
            a(f"v_lshrrev_b32 v{t1}, 16, v{t1}")
            a(f"v_mul_u32_u24 v{t2}, 20, v{t1}")
            a(f"v_sub_u32 v{t2}, v{t0}, v{t2}")
            a(f"v_cmp_lt_u32 vcc, 9, v{t2}")
            a(f"v_lshlrev_b32 v{t1}, 17, v{t1}")
            a(f"v_lshl_add_u32 v{t1}, v{vH}, 9, v{t1}")
            a(f"v_cndmask_b32 v{t3}, 0, 1, vcc")
            a(f"v_mul_u32_u24 v{t0}, 10, v{t3}")
            a(f"v_sub_u32 v{t2}, v{t2}, v{t0}")
            a(f"v_lshrrev_b32 v{t0}, 2, v{t2}")
            a(f"v_and_b32 v{t2}, 3, v{t2}")
            a(f"v_lshl_add_u32 v{t2}, v{t0}, 3, v{t2}")
            a(f"v_lshl_add_u32 v{t2}, v{t3}, 2, v{t2}")
            a(f"v_lshl_add_u32 v{AD[t]}, v{t2}, 4, v{t1}")
        a("s_waitcnt lgkmcnt(0)")
        PK = EP+40
        for t in range(NT):
            A = g.ACC[t]
            a(f"v_mov_b32 v{CSv+2*t+1}, v{CSv+2*t}")
            for r in range(0, 16, 2):
                a(f"v_pk_mul_f32 {vr(A+r,2)}, {vr(A+r,2)}, {vr(RS+r,2)}")
                a(f"v_pk_fma_f32 {vr(A+r,2)}, {vr(MR+r,2)}, {vr(CSv+2*t,2)}, {vr(A+r,2)}")
            pk = PK + 8*(t % 2)
            for p in range(8):
                a(f"v_cvt_pk_bf16_f32 v{pk+p}, v{A+2*p}, v{A+2*p+1}")
            a(f"buffer_store_dwordx4 {vr(pk,4)}, v{AD[t]}, s[{g.sWS}:{g.sWS+3}], s49 offen")
            a(f"buffer_store_dwordx4 {vr(pk+4,4)}, v{AD[t]}, s[{g.sWS}:{g.sWS+3}], s49 offen offset:1024")
    else:
        CSr, B1r = EP, EP+16
        PK = EP+32
        if typ == "QK":
            a(f"s_cmp_lt_u32 s{g.sCb}, 5")
            a(f"s_cselect_b32 s49, {OFF_Q}, {OFF_K}")
            a(f"s_cselect_b32 s50, 0, 640")
            a(f"s_mul_i32 s51, s{g.sTok}, 40")
            a("s_add_u32 s49, s49, s51")
            a(f"s_sub_u32 s50, s{g.sCol}, s50")
            a(f"v_lshlrev_b32 v{t5}, 3, v{vR}")
            a(f"s_mov_b32 s52, {81920 - 1280}")
            a(f"v_lshl_add_u32 v{t4}, v{vH}, 2, s50")
        else:
            a(f"s_mul_i32 s49, s{g.sTok}, 3072")
            a(f"s_add_u32 s49, s49, {OFF_H}")
            a(f"s_lshl_b32 s51, s{g.sCol}, 6")
            a("s_add_u32 s49, s49, s51")
            a(f"v_lshlrev_b32 v{t5}, 4, v{vLane}")
            k1 = -2.0 * 0.7978845608028654 * 1.4426950408889634
            k2 = k1 * 0.044715
            K1, K2, ONE = vT[12], EP+48, EP+50
            for r, val in ((K1, k1), (K2, k2), (ONE, 1.0)):
                a(f"v_mov_b32 v{r}, {f2u(val):#x}")
                a(f"v_mov_b32 v{r+1}, {f2u(val):#x}")
        a("s_waitcnt lgkmcnt(0)")
        a("s_barrier")
        for t in range(NT):
            a(f"s_lshl_b32 s48, s{g.sT[t]}, 7")
            a(f"s_add_u32 s48, s48, {SCR}")
            a(f"v_lshl_add_u32 v{t0}, v{vH}, 4, s48")
            for q in range(4):
                a(f"ds_read_b128 {vr(CSr+4*q,4)}, v{t0} offset:{L_CS+32*q}")
                if typ == "F":
                    a(f"ds_read_b128 {vr(B1r+4*q,4)}, v{t0} offset:{L_B1+32*q}")
            A = g.ACC[t]
            pk = PK + 8*(t % 2)
            if typ == "QK":
                AD = [vT[1], vT[2], vT[6], vT[7]]
                for q in range(4):
                    a(f"s_lshl_b32 s48, s{g.sT[t]}, 5")
                    a(f"s_add_u32 s48, s48, {8*q}")
                    a(f"v_add_u32 v{t3}, s48, v{t4}")
                    a(f"v_mul_u32_u24 v{AD[q]}, 3277, v{t3}")
                    a(f"v_lshrrev_b32 v{AD[q]}, 16, v{AD[q]}")
                    a(f"v_lshl_add_u32 v{t3}, v{t3}, 6, v{t5}")
                    a(f"v_mad_u32_u24 v{AD[q]}, v{AD[q]}, s52, v{t3}")
                for r in range(0, 16, 2):
                    a(f"v_pk_mul_f32 {vr(A+r,2)}, {vr(A+r,2)}, {vr(vRs,2)}")
                a("s_waitcnt lgkmcnt(0)")
                for r in range(0, 16, 2):
                    a(f"v_pk_fma_f32 {vr(A+r,2)}, {vr(CSr+r,2)}, {vr(vMr,2)}, {vr(A+r,2)}")
                for p in range(8):
                    a(f"v_cvt_pk_bf16_f32 v{pk+p}, v{A+2*p}, v{A+2*p+1}")
                for q in range(4):
                    a(f"buffer_store_dwordx2 {vr(pk+2*q,2)}, v{AD[q]}, s[{g.sWS}:{g.sWS+3}], s49 offen")
            else:
                a("s_waitcnt lgkmcnt(0)")
                for r in range(0, 16, 2):
                    a(f"v_pk_fma_f32 {vr(B1r+r,2)}, {vr(CSr+r,2)}, {vr(vMr,2)}, {vr(B1r+r,2)}")
                for r in range(0, 16, 2):
                    a(f"v_pk_fma_f32 {vr(A+r,2)}, {vr(A+r,2)}, {vr(vRs,2)}, {vr(B1r+r,2)}")
                for r in range(0, 16, 2):
                    a(f"v_pk_mul_f32 {vr(CSr+r,2)}, {vr(A+r,2)}, {vr(A+r,2)}")
                for r in range(0, 16, 2):
                    a(f"v_pk_fma_f32 {vr(CSr+r,2)}, {vr(CSr+r,2)}, {vr(K2,2)}, {vr(K1,2)}")
                for r in range(0, 16, 2):
                    a(f"v_pk_mul_f32 {vr(CSr+r,2)}, {vr(CSr+r,2)}, {vr(A+r,2)}")
                for r in range(16):
                    a(f"v_exp_f32 v{CSr+r}, v{CSr+r}")
                for r in range(0, 16, 2):
                    a(f"v_pk_add_f32 {vr(CSr+r,2)}, {vr(CSr+r,2)}, {vr(ONE,2)}")
                for r in range(16):
                    a(f"v_rcp_f32 v{CSr+r}, v{CSr+r}")
                for r in range(0, 16, 2):
                    a(f"v_pk_mul_f32 {vr(A+r,2)}, {vr(A+r,2)}, {vr(CSr+r,2)}")
                for p in range(8):
                    a(f"v_cvt_pk_bf16_f32 v{pk+p}, v{A+2*p}, v{A+2*p+1}")
                a("s_nop 1")
                for pr in range(2):
                    a(f"v_permlane32_swap_b32 v{pk+4*pr}, v{pk+4*pr+2}")
                    a(f"v_permlane32_swap_b32 v{pk+4*pr+1}, v{pk+4*pr+3}")
                a(f"s_lshl_b32 s48, s{g.sT[t]}, 11")
                a("s_add_u32 s48, s48, s49")
                for pr in range(2):
                    a(f"buffer_store_dwordx4 {vr(pk+4*pr,4)}, v{t5}, s[{g.sWS}:{g.sWS+3}], s48 offen offset:{1024*pr}")
    if g.stamps:
        a("s_memtime s[62:63]\ns_memrealtime s[70:71]\ns_waitcnt lgkmcnt(0)")
        a("s_sub_u32 s62, s62, s60\ns_sub_u32 s70, s70, s68\ns_sub_u32 s64, s64, s60\ns_sub_u32 s66, s66, s60")
        a(f"v_mov_b32 v8, s70\nv_mov_b32 v9, s64\nv_mov_b32 v10, s66\nv_mov_b32 v11, s62")
        a(f"s_lshl_b32 s26, s2, 3\ns_add_u32 s26, s26, s{sWave}\ns_lshl_b32 s26, s26, 4\ns_add_u32 s26, s26, {24<<20}")
        a("v_mov_b32 v12, 0\ns_mov_b64 exec, 1")
        a(f"buffer_store_dwordx4 v[8:11], v12, s[{g.sWS}:{g.sWS+3}], s26 offen")
    a("s_endpgm")
```

```python
from genlib import *
import struct, os
FEXP = os.environ.get('FEXP','')
def f2u(x): return struct.unpack("<I", struct.pack("<f", x))[0]

KB = 5120

def ksplit_setup(a, R):
    vLane, t0, t1, t2, t3 = R["vLane"], *R["t"][:4]
    for n in range(5):
        a(f"v_add_u32 v{t0}, {64*n}, v{vLane}")
        a(f"v_mul_u32_u24 v{t1}, 3277, v{t0}")
        a(f"v_lshrrev_b32 v{t1}, 16, v{t1}")
        a(f"v_mul_u32_u24 v{t2}, 20, v{t1}")
        a(f"v_sub_u32 v{t2}, v{t0}, v{t2}")
        a(f"v_mul_u32_u24 v{t1}, 1280, v{t1}")
        a(f"v_lshl_add_u32 v{R['vWd'][n]}, v{t2}, 4, v{t1}")
        if 0 < n < 4:
            a(f"v_subrev_u32 v{R['vWd'][n]}, {1024*n}, v{R['vWd'][n]}")
    a(f"v_bfe_u32 v{t0}, v{vLane}, 2, 2")
    a(f"v_and_b32 v{t1}, 3, v{vLane}")
    a(f"v_bfe_u32 v{t2}, v{vLane}, 4, 1")
    a(f"v_lshrrev_b32 v{t3}, 5, v{vLane}")
    a(f"v_lshl_add_u32 v{t3}, v{t3}, 3, v{t0}")
    a(f"v_mul_u32_u24 v{t3}, 320, v{t3}")
    a(f"v_lshl_add_u32 v{t3}, v{t2}, 5, v{t3}")
    a(f"v_lshl_add_u32 v{t3}, v{t1}, 3, v{t3}")
    a(f"v_add_u32 v{R['vWa']}, s{R['sLds']}, v{t3}")
    a(f"v_lshlrev_b32 v{R['vAo']}, 4, v{vLane}")

def ksplit_gemm(a, R, nks, sA, sAoff, sW, sWoff, RING, prio=False):
    ACC, AF, WF = R["ACC"], R["AF"], R["WF"]
    def issue(ks):
        b = ks % RING
        a(f"s_add_u32 m0, s{R['sLds']}, {b*KB}")
        if "samea" in FEXP: a(f"buffer_load_dwordx4 {vr(AF[b],4)}, v{R['vAo']}, s[{sA}:{sA+3}], 0 offen")
        else: a(f"buffer_load_dwordx4 {vr(AF[b],4)}, v{R['vAo']}, s[{sA}:{sA+3}], s{sAoff} offen")
        for n in range(4):
            if "nodma" in FEXP: a("s_nop 0"); continue
            if "plain" in FEXP: a(f"buffer_load_dwordx4 {vr(WF[n],4)}, v{R['vWd'][n]}, s[{sW}:{sW+3}], s{sWoff} offen offset:{1024*n}"); continue
            a(f"buffer_load_dwordx4 v{R['vWd'][n]}, s[{sW}:{sW+3}], s{sWoff} offen offset:{1024*n} lds")
        a(f"s_add_u32 m0, s{R['sLds']}, {b*KB + 4096}")
        a(f"s_add_u32 s{sAoff}, s{sAoff}, 1024")
        if "nodma" in FEXP: a("s_nop 0")
        elif "plain" in FEXP: a(f"buffer_load_dwordx4 {vr(WF[4],4)}, v{R['vWd'][4]}, s[{sW}:{sW+3}], s{sWoff} offen")
        else: a(f"buffer_load_dwordx4 v{R['vWd'][4]}, s[{sW}:{sW+3}], s{sWoff} offen lds")
        a(f"s_add_u32 s{sWoff}, s{sWoff}, {16*1280}")
    def reads(ks):
        b = ks % RING
        for t in range(5):
            for rd in range(2):
                a(f"ds_read_b64_tr_b16 {vr(WF[t]+2*rd,2)}, v{R['vWa']} offset:{b*KB + rd*1280 + t*64}")
    for ks in range(min(RING-1, nks)):
        issue(ks)
    for ks in range(nks):
        nxt = ks + RING - 1
        if nxt < nks:
            issue(nxt)
        infl = min(nks - 1 - ks, RING - 1)
        a(f"s_waitcnt vmcnt({(1 if 'nodma' in FEXP else 6)*infl})")
        if "nocomp" in FEXP: continue
        if prio: a("s_setprio 3")
        reads(ks)
        for t in range(5):
            if t in (0, 2): a(f"s_waitcnt lgkmcnt({6 if t == 0 else 0})")
            a(f"v_mfma_f32_32x32x16_bf16 {vr(ACC[t],16)}, {vr(WF[t],4)}, {vr(AF[ks%RING],4)}, {vr(ACC[t],16)}")
        if prio: a("s_setprio 0")

def ksplit_reduce(a, R, dst):
    ACC = R["ACC"]; t0, t1 = R["t"][:2]
    a("s_nop 15")
    a("s_nop 3")
    a("s_barrier")
    a(f"s_mul_i32 s48, s{R['sWave']}, 5120")
    a(f"v_add_u32 v{t0}, s48, v{R['vAo']}")
    a(f"v_add_u32 v{t1}, 40960, v{t0}")
    for g in range(4):
        for t in range(5):
            a(f"ds_write_b128 v{t0 if g < 2 else t1}, {vr(ACC[t]+4*g,4)} offset:{(g%2)*20480 + t*1024}")
    a("s_waitcnt lgkmcnt(0)")
    a("s_barrier")
    a(f"s_mul_i32 s48, s{R['sWave']}, 20480")
    a(f"v_add_u32 v{t0}, s48, v{R['vAo']}")
    for w in range(4):
        for t in range(5):
            a(f"ds_read_b128 {vr(ACC[t]+4*w,4)}, v{t0} offset:{w*5120 + t*1024}")
    a("s_waitcnt lgkmcnt(0)")
    for t in range(5):
        for i in range(4):
            a(f"v_add_f32 v{ACC[t]+i}, v{ACC[t]+i}, v{ACC[t]+4+i}")
            a(f"v_add_f32 v{ACC[t]+8+i}, v{ACC[t]+8+i}, v{ACC[t]+12+i}")
            a(f"v_add_f32 v{dst[t]+i}, v{ACC[t]+i}, v{ACC[t]+8+i}")
    a("s_barrier")

def gen_p3(a, name="p3_kernel", stamps=False, with_ffn2=True, RING=6):
    kernel_header(a, name)
    sX, sWo, sW2, sWS, sOut, sB2 = 4, 8, 12, 16, 20, 24
    sWave, sTt, sCb, sLds, sAoff, sWoff = 28, 29, 30, 31, 32, 33
    R = dict(vLane=1, t=[2, 3, 4, 5, 6, 7], vWd=[8, 9, 10, 11, 12], vWa=13, vAo=14, sLds=sLds, sWave=sWave,
             AF=[188 + 4*i for i in range(RING)], WF=[28 + 4*t for t in range(5)], ACC=[48 + 16*t for t in range(5)])
    G = [128 + 4*t for t in range(5)]
    Sv = [148 + 4*t for t in range(5)]
    XV = [168 + 2*t for t in range(5)]
    BV = [178 + 2*t for t in range(5)]
    NV = 188 + 4*RING
    vLane = 1; t0, t1, t2, t3 = R["t"][:4]
    a("s_cmp_ge_u32 s2, 256")
    a(f"s_cbranch_scc1 {name}_end")
    a(f"s_load_dwordx2 s[36:37], s[0:1], {KA['x']}")
    a(f"s_load_dwordx2 s[38:39], s[0:1], {KA['wo']}")
    a(f"s_load_dwordx4 s[40:43], s[0:1], {KA['w2']}")
    a(f"s_load_dwordx2 s[44:45], s[0:1], {KA['out']}")
    a(f"s_load_dwordx2 s[46:47], s[0:1], {KA['ws']}")
    if stamps: a("s_memtime s[60:61]\ns_memrealtime s[68:69]")
    a("v_lshrrev_b32 v2, 6, v0")
    a(f"v_and_b32 v{vLane}, 63, v0")
    a("s_and_b32 s48, s2, 7")
    a(f"v_readfirstlane_b32 s{sWave}, v2")
    a("s_lshr_b32 s49, s2, 3")
    a(f"s_and_b32 s{sCb}, s48, 3")
    a("s_lshr_b32 s48, s48, 2")
    a("s_lshl_b32 s48, s48, 5")
    a(f"s_add_u32 s{sTt}, s48, s49")
    a(f"s_mul_i32 s{sLds}, s{sWave}, {RING*KB}")
    ksplit_setup(a, R)
    for t in range(5):
        for r in range(16):
            a(f"v_mov_b32 v{R['ACC'][t]+r}, 0")
    a("s_waitcnt lgkmcnt(0)")
    make_srd(a, sX, 36, S*D*2)
    make_srd(a, sWo, 38, D*D*2)
    make_srd(a, sW2, 40, F*D*2)
    make_srd(a, sB2, 42, D*2)
    make_srd(a, sOut, 44, S*D*2)
    make_srd(a, sWS, 46, WS_BYTES)
    vE = 15
    a(f"v_and_b32 v{t0}, 31, v{vLane}")
    a(f"v_lshrrev_b32 v{t1}, 5, v{vLane}")
    a(f"v_mul_u32_u24 v{t0}, 1280, v{t0}")
    a(f"v_lshl_add_u32 v{vE}, v{t1}, 3, v{t0}")
    a(f"s_mul_i32 s50, s{sCb}, 320")
    a(f"s_lshl_b32 s51, s{sWave}, 4")
    a("s_add_u32 s50, s50, s51")
    a(f"s_mul_i32 s51, s{sTt}, 40960")
    a("s_add_u32 s51, s51, s50")
    a(f"v_lshlrev_b32 v{t1}, 3, v{t1}")
    for t in range(5):
        a(f"buffer_load_dwordx2 {vr(XV[t],2)}, v{vE}, s[{sX}:{sX+3}], s51 offen offset:{64*t}")
        if with_ffn2:
            a(f"buffer_load_dwordx2 {vr(BV[t],2)}, v{t1}, s[{sB2}:{sB2+3}], s50 offen offset:{64*t}")
    if with_ffn2:
        a(f"s_mul_i32 s{sAoff}, s{sTt}, {96*1024}")
        a(f"s_mul_i32 s48, s{sWave}, {24*1024}")
        a(f"s_add_u32 s{sAoff}, s{sAoff}, s48")
        a(f"s_add_u32 s{sAoff}, s{sAoff}, {OFF_H}")
        a(f"s_mul_i32 s{sWoff}, s{sWave}, {384*1280}")
        a(f"s_mul_i32 s48, s{sCb}, 320")
        a(f"s_add_u32 s{sWoff}, s{sWoff}, s48")
        ksplit_gemm(a, R, 24, sWS, sAoff, sW2, sWoff, RING)
        ksplit_reduce(a, R, G)
        for t in range(5):
            for i in range(4):
                src = BV[t] + i//2
                if i % 2 == 0: a(f"v_lshlrev_b32 v{t0}, 16, v{src}")
                else: a(f"v_and_b32 v{t0}, 0xffff0000, v{src}")
                a(f"v_add_f32 v{G[t]+i}, v{G[t]+i}, v{t0}")
                a(f"v_mul_f32 v{t1}, {f2u(-1.4426950408889634):#x}, v{G[t]+i}")
                a(f"v_exp_f32 v{t1}, v{t1}")
                a("s_nop 0")
                a(f"v_add_f32 v{t1}, 1.0, v{t1}")
                a(f"v_rcp_f32 v{t1}, v{t1}")
                a("s_nop 0")
                a(f"v_mul_f32 v{G[t]+i}, v{G[t]+i}, v{t1}")
        for t in range(5):
            for r in range(16):
                a(f"v_mov_b32 v{R['ACC'][t]+r}, 0")
    else:
        a(f"s_lshl_b32 s52, s{sTt}, 2")
        a(f"s_add_u32 s52, s52, s{sCb}")
        a("s_lshl_b32 s52, s52, 2")
        a(f"s_add_u32 s52, s52, s{sWave}")
        a("s_mul_i32 s52, s52, 2560")
        a(f"s_add_u32 s52, s52, {OFF_G}")
        a(f"v_lshlrev_b32 v{t2}, 3, v{vLane}")
        for t in range(5):
            a(f"buffer_load_dwordx2 {vr(BV[t],2)}, v{t2}, s[{sWS}:{sWS+3}], s52 offen offset:{512*t}")
    a(f"s_mul_i32 s{sAoff}, s{sTt}, {40*1024}")
    a(f"s_mul_i32 s48, s{sWave}, {10*1024}")
    a(f"s_add_u32 s{sAoff}, s{sAoff}, s48")
    a(f"s_add_u32 s{sAoff}, s{sAoff}, {OFF_O}")
    a(f"s_mul_i32 s{sWoff}, s{sWave}, {160*1280}")
    a(f"s_mul_i32 s48, s{sCb}, 320")
    a(f"s_add_u32 s{sWoff}, s{sWoff}, s48")
    ksplit_gemm(a, R, 10, sWS, sAoff, sWo, sWoff, RING)
    ksplit_reduce(a, R, Sv)
    for t in range(5):
        for i in range(4):
            src = XV[t] + i//2
            if i % 2 == 0: a(f"v_lshlrev_b32 v{t0}, 16, v{src}")
            else: a(f"v_and_b32 v{t0}, 0xffff0000, v{src}")
            if not with_ffn2:
                src = BV[t] + i//2
                if i % 2 == 0: a(f"v_lshlrev_b32 v{G[t]+i}, 16, v{src}")
                else: a(f"v_and_b32 v{G[t]+i}, 0xffff0000, v{src}")
            a(f"v_fma_f32 v{Sv[t]+i}, v{Sv[t]+i}, v{G[t]+i}, v{t0}")
        a(f"v_cvt_pk_bf16_f32 v{XV[t]}, v{Sv[t]}, v{Sv[t]+1}")
        a(f"v_cvt_pk_bf16_f32 v{XV[t]+1}, v{Sv[t]+2}, v{Sv[t]+3}")
        a(f"buffer_store_dwordx2 {vr(XV[t],2)}, v{vE}, s[{sOut}:{sOut+3}], s51 offen offset:{64*t}")
    if stamps:
        a("s_memtime s[62:63]\ns_memrealtime s[70:71]\ns_waitcnt lgkmcnt(0)")
        a("s_sub_u32 s62, s62, s60\ns_sub_u32 s70, s70, s68")
        a(f"v_mov_b32 v8, s70\nv_mov_b32 v9, s62\nv_mov_b32 v10, s62\nv_mov_b32 v11, s62")
        a(f"s_lshl_b32 s26, s2, 2\ns_add_u32 s26, s26, s{sWave}\ns_lshl_b32 s26, s26, 4\ns_add_u32 s26, s26, {24<<20}")
        a("v_mov_b32 v12, 0\ns_mov_b64 exec, 1")
        a(f"buffer_store_dwordx4 v[8:11], v12, s[{sWS}:{sWS+3}], s26 offen")
    a.label(f"{name}_end")
    a("s_endpgm")
    return NV, max(81920, 4*RING*KB)


def gen_ffn2_waves(a, name, RING=6):
    LCNT = 4*RING*KB
    sW2, sWS, sB2 = 12, 16, 24
    sWave, sTt, sCb, sLds, sAoff, sWoff = 28, 29, 30, 31, 32, 33
    R = dict(vLane=1, t=[2, 3, 4, 5, 6, 7], vWd=[8, 9, 10, 11, 12], vWa=13, vAo=14, sLds=sLds, sWave=sWave,
             AF=[128 + 4*i for i in range(RING)], WF=[28 + 4*t for t in range(5)], ACC=[48 + 16*t for t in range(5)])
    BV = [16 + 2*t for t in range(5)]
    vLane = 1; t0, t1, t2, t3 = R["t"][:4]
    ACC = R["ACC"]
    a(f"s_load_dwordx4 s[40:43], s[0:1], {KA['w2']}")
    a(f"s_load_dwordx2 s[46:47], s[0:1], {KA['ws']}")
    a(f"v_and_b32 v{vLane}, 63, v0")
    a("s_and_b32 s48, s2, 7")
    a(f"s_sub_u32 s{sWave}, s10, 8")
    a("s_lshr_b32 s49, s2, 3")
    a(f"s_and_b32 s{sCb}, s48, 3")
    a("s_lshr_b32 s48, s48, 2")
    a("s_lshl_b32 s48, s48, 5")
    a(f"s_add_u32 s{sTt}, s48, s49")
    a(f"s_mul_i32 s{sLds}, s{sWave}, {RING*KB}")
    a(f"v_mov_b32 v{t0}, {LCNT}")
    a(f"v_mov_b32 v{t1}, 0")
    a(f"ds_write_b32 v{t0}, v{t1}")
    a("s_waitcnt lgkmcnt(0)")
    a("s_barrier")
    ksplit_setup(a, R)
    make_srd(a, sW2, 40, F*D*2)
    make_srd(a, sB2, 42, D*2)
    make_srd(a, sWS, 46, WS_BYTES)
    a(f"s_mul_i32 s50, s{sCb}, 320")
    a(f"s_lshl_b32 s51, s{sWave}, 4")
    a("s_add_u32 s50, s50, s51")
    a(f"v_lshrrev_b32 v{t1}, 5, v{vLane}")
    a(f"v_lshlrev_b32 v{t1}, 3, v{t1}")
    for t in range(5):
        a(f"buffer_load_dwordx2 {vr(BV[t],2)}, v{t1}, s[{sB2}:{sB2+3}], s50 offen offset:{64*t}")
    a(f"s_mul_i32 s{sAoff}, s{sTt}, {96*1024}")
    a(f"s_mul_i32 s48, s{sWave}, {24*1024}")
    a(f"s_add_u32 s{sAoff}, s{sAoff}, s48")
    a(f"s_add_u32 s{sAoff}, s{sAoff}, {OFF_H}")
    a(f"s_mul_i32 s{sWoff}, s{sWave}, {384*1280}")
    a(f"s_mul_i32 s48, s{sCb}, 320")
    a(f"s_add_u32 s{sWoff}, s{sWoff}, s48")
    for t in range(5):
        for r in range(16):
            a(f"v_mov_b32 v{ACC[t]+r}, 0")
    ksplit_gemm(a, R, 24, sWS, sAoff, sW2, sWoff, RING, prio=("prio3" in FEXP))
    if "prio3" in FEXP: a("s_setprio 3")
    a("s_nop 15")
    a("s_nop 3")
    a(f"v_add_u32 v{t0}, s{sLds}, v{R['vAo']}")
    for w in range(4):
        a(f"s_cmp_lg_u32 s{sWave}, {w}")
        a(f"s_cbranch_scc1 {name}_f2w{w}")
        for g in range(4):
            if g == w: continue
            for t in range(5):
                a(f"ds_write_b128 v{t0}, {vr(ACC[t]+4*g,4)} offset:{(((g-w)&3)-1)*5120 + t*1024}")
        if w:
            a("s_waitcnt lgkmcnt(0)")
            for t in range(5):
                for i in range(4):
                    a(f"v_mov_b32 v{ACC[t]+i}, v{ACC[t]+4*w+i}")
        a.label(f"{name}_f2w{w}")
    a(f"v_mov_b32 v{t2}, {LCNT}")
    a(f"v_mov_b32 v{t3}, 1")
    a("s_waitcnt lgkmcnt(0)")
    a("s_mov_b64 exec, 1")
    a(f"ds_add_u32 v{t2}, v{t3}")
    a("s_mov_b64 exec, -1")
    a.label(f"{name}_f2spin")
    a(f"ds_read_b32 v{t3}, v{t2}")
    a("s_waitcnt lgkmcnt(0)")
    a(f"v_readfirstlane_b32 s48, v{t3}")
    a("s_cmp_ge_u32 s48, 4")
    a(f"s_cbranch_scc1 {name}_f2go")
    a("s_sleep 2")
    a(f"s_branch {name}_f2spin")
    a.label(f"{name}_f2go")
    for d in range(1, 4):
        a(f"s_sub_u32 s48, s{sWave}, {d}")
        a("s_and_b32 s48, s48, 3")
        a(f"s_mul_i32 s48, s48, {RING*KB}")
        a(f"v_add_u32 v{t0}, s48, v{R['vAo']}")
        for t in range(5):
            a(f"ds_read_b128 {vr(ACC[t]+4*d,4)}, v{t0} offset:{(d-1)*5120 + t*1024}")
    a("s_waitcnt lgkmcnt(0)")
    a(f"s_lshl_b32 s52, s{sTt}, 2")
    a(f"s_add_u32 s52, s52, s{sCb}")
    a("s_lshl_b32 s52, s52, 2")
    a(f"s_add_u32 s52, s52, s{sWave}")
    a("s_mul_i32 s52, s52, 2560")
    a(f"s_add_u32 s52, s52, {OFF_G}")
    a(f"v_lshlrev_b32 v{t2}, 3, v{vLane}")
    for t in range(5):
        for i in range(4):
            a(f"v_add_f32 v{ACC[t]+i}, v{ACC[t]+i}, v{ACC[t]+4+i}")
            a(f"v_add_f32 v{ACC[t]+8+i}, v{ACC[t]+8+i}, v{ACC[t]+12+i}")
            src = BV[t] + i//2
            if i % 2 == 0: a(f"v_lshlrev_b32 v{ACC[t]+4+i}, 16, v{src}")
            else: a(f"v_and_b32 v{ACC[t]+4+i}, 0xffff0000, v{src}")
            a(f"v_add_f32 v{ACC[t]+i}, v{ACC[t]+i}, v{ACC[t]+8+i}")
            a(f"v_add_f32 v{ACC[t]+i}, v{ACC[t]+i}, v{ACC[t]+4+i}")
            a(f"v_mul_f32 v{ACC[t]+4+i}, {f2u(-1.4426950408889634):#x}, v{ACC[t]+i}")
        for i in range(4): a(f"v_exp_f32 v{ACC[t]+4+i}, v{ACC[t]+4+i}")
        for i in range(4): a(f"v_add_f32 v{ACC[t]+4+i}, 1.0, v{ACC[t]+4+i}")
        for i in range(4): a(f"v_rcp_f32 v{ACC[t]+4+i}, v{ACC[t]+4+i}")
        for i in range(4): a(f"v_mul_f32 v{ACC[t]+i}, v{ACC[t]+i}, v{ACC[t]+4+i}")
        a(f"v_cvt_pk_bf16_f32 v{ACC[t]+8}, v{ACC[t]}, v{ACC[t]+1}")
        a(f"v_cvt_pk_bf16_f32 v{ACC[t]+9}, v{ACC[t]+2}, v{ACC[t]+3}")
        a(f"buffer_store_dwordx2 {vr(ACC[t]+8,2)}, v{t2}, s[{sWS}:{sWS+3}], s52 offen offset:{512*t}")
    a("s_endpgm")
    return LCNT + 64
```

```python
import sys, os
from genlib import *
from gen_attn import gen_attn
from gen_p1 import gen_p1
from gen_p3 import gen_p3

STAMPS = len(sys.argv) > 3 and sys.argv[3] == "stamps"
HDR = open("recurrent_scan__softmax_full_mha__mixer_channel_mlp__prompt.s.ref").read().split("; Override launch")[0]

def build(which):
    a = Asm()
    launches = []; descs = []
    body = Asm()
    for k in which:
        if k == "attnf":
            nv, lds = gen_attn(body, "attn_kernel", stamps=STAMPS, ffn2=True, ring=int(os.environ.get("RING","3")))
            launches.append(f"; @launch kernel=attn_kernel grid=(256,1,1) block=(768,1,1) lds={lds}")
            descs.append(kernel_desc("attn_kernel", nv))
        if k == "p3o":
            nv, lds = gen_p3(body, "p3_kernel", stamps=STAMPS, with_ffn2=False)
            launches.append(f"; @launch kernel=p3_kernel grid=(256,1,1) block=(256,1,1) lds={lds}")
            descs.append(kernel_desc("p3_kernel", nv))
        if k == "p3":
            nv, lds = gen_p3(body, "p3_kernel", stamps=STAMPS)
            launches.append(f"; @launch kernel=p3_kernel grid=(256,1,1) block=(256,1,1) lds={lds}")
            descs.append(kernel_desc("p3_kernel", nv))
        if k == "p1":
            nv, lds = gen_p1(body, "p1_kernel", stamps=STAMPS)
            launches.append(f"; @launch kernel=p1_kernel grid=(256,1,1) block=(512,1,1) lds={lds}")
            descs.append(kernel_desc("p1_kernel", nv))
        if k == "attn":
            nv, lds = gen_attn(body, "attn_kernel", stamps=STAMPS)
            launches.append(f"; @launch kernel=attn_kernel grid=(256,1,1) block=(512,1,1) lds={lds}")
            descs.append(kernel_desc("attn_kernel", nv))
    out = HDR + "\n".join(launches) + "\n" + '.amdgcn_target "amdgcn-amd-amdhsa--gfx950"\n.text\n' + body.text()
    out += '.section .rodata,"a"\n' + "".join(".p2align 6\n" + d for d in descs)
    return out

if __name__ == "__main__":
    which = sys.argv[2].split(",")
    open(sys.argv[1], "w").write(build(which))
```

```python
from genlib import *
from gen_p3 import gen_ffn2_waves
import os
AEXP = os.environ.get("AEXP", "")

def gen_attn(a, name="attn_kernel", stamps=False, ffn2=False, ring=3):
    kernel_header(a, name)
    vK1o, vK2o, vVo, vT0, vT1, vT2, vLane = 1, 2, 3, 4, 5, 6, 7
    Q1 = [8 + 6*i for i in range(4)]
    Q2 = [12 + 6*i for i in range(4)]
    O = [32 + 16*i for i in range(4)]
    Sb = [96, 112]
    KV = [128, 142]
    vM = [156, 157, 158, 159]
    NV = 160
    def K1(s): return KV[s]
    def K2(s): return KV[s] + 4
    def V1(s): return KV[s] + 6
    def V2(s): return KV[s] + 10
    sWS = 4
    sHead, sQb, sWave, sQg, sKq = 8, 9, 10, 11, 12
    sKoff, sVoff, sCnt, sNmax, sT, sKbase, sVbase = 13, 14, 15, 16, 17, 18, 19
    sHi = 20

    a("s_cmp_ge_u32 s2, 256")
    a(f"s_cbranch_scc1 {name}_end")
    a(f"s_load_dwordx2 s[24:25], s[0:1], {KA['ws']}")
    if stamps: a("s_memtime s[40:41]\ns_memrealtime s[48:49]")
    a("v_lshrrev_b32 v4, 6, v0")
    a(f"v_and_b32 v{vLane}, 63, v0")
    a("s_and_b32 s26, s2, 7")
    a("v_readfirstlane_b32 s10, v4")
    if ffn2:
        a("s_nop 3")
        a("s_cmp_ge_u32 s10, 8")
        a(f"s_cbranch_scc1 {name}_ffn2")
    a("s_lshr_b32 s27, s2, 3")
    a("s_and_b32 s28, s27, 3")
    a("s_lshl_b32 s26, s26, 2")
    a(f"s_add_u32 s{sHead}, s26, s28")
    a(f"s_lshr_b32 s{sQb}, s27, 2")
    a(f"s_and_b32 s{sQg}, s{sWave}, 1")
    a(f"s_lshr_b32 s{sKq}, s{sWave}, 1")
    a(f"s_mov_b32 s{sHi}, 0")
    a(f"s_mov_b32 s{sHi+1}, -1")
    a("s_mov_b32 s32, -1")
    a("s_mov_b32 s33, 0")
    a("s_mov_b32 s34, 0x33ffff")
    a("s_mov_b32 s35, 0x33ffff")
    a("s_mov_b32 s36, 0x440000")
    a("s_mov_b32 s37, 0x440000")
    a(f"v_and_b32 v{vT0}, 31, v{vLane}")
    a(f"v_lshrrev_b32 v{vT1}, 5, v{vLane}")
    a(f"v_lshlrev_b32 v{vK2o}, 3, v{vT0}")
    a(f"v_lshl_add_u32 v{vK1o}, v{vT1}, 9, v{vK2o}")
    a(f"v_lshlrev_b32 v{vVo}, 4, v{vLane}")
    a(f"s_mul_i32 s26, s{sHead}, 81920")
    a(f"s_lshl_b32 s27, s{sQb}, 1")
    a(f"s_add_u32 s27, s27, s{sQg}")
    a("s_mul_i32 s27, s27, 5120")
    a("s_add_u32 s27, s27, s26")
    a("s_add_u32 s28, s27, 2560")
    a(f"s_mul_i32 s29, s{sKq}, 20480")
    a("s_add_u32 s29, s29, s26")
    a(f"s_add_u32 s{sKbase}, s29, {OFF_K}")
    a(f"s_lshl_b32 s29, s{sHead}, 17")
    a(f"s_lshl_b32 s30, s{sKq}, 15")
    a("s_add_u32 s29, s29, s30")
    a(f"s_add_u32 s{sVbase}, s29, {OFF_V}")
    for st in range(2):
        a(f"v_mov_b32 v{K2(st)}, 0x3f803f80")
        a(f"v_mov_b32 v{K2(st)+1}, 0x3f80")
        for r in range(8):
            a(f"v_mov_b32 v{V1(st)+r}, 0")
    for i in range(4):
        a(f"v_mov_b32 v{Q2[i]}, 0")
        a(f"v_mov_b32 v{Q2[i]+1}, 0")
    a("s_mov_b64 exec, s[36:37]")
    for st in range(2):
        for r in range(8):
            a(f"v_mov_b32 v{V1(st)+r}, 0x3f803f80")
    a("s_mov_b64 exec, -1")
    a("s_waitcnt lgkmcnt(0)")
    make_srd(a, sWS, 24, WS_BYTES)
    def loadk(s):
        a(f"buffer_load_dwordx2 {vr(K1(s),2)}, v{vK1o}, s[4:7], s{sKoff} offen")
        a(f"buffer_load_dwordx2 {vr(K1(s)+2,2)}, v{vK1o}, s[4:7], s{sKoff} offen offset:256")
        a("s_mov_b64 exec, s[32:33]")
        a(f"buffer_load_dwordx2 {vr(K2(s),2)}, v{vK2o}, s[4:7], s{sKoff} offen offset:1024")
    def loads(s):
        loadk(s)
        a("s_mov_b64 exec, s[34:35]")
        a(f"buffer_load_dwordx4 {vr(V1(s),4)}, v{vVo}, s[4:7], s{sVoff} offen")
        a(f"buffer_load_dwordx4 {vr(V2(s),4)}, v{vVo}, s[4:7], s{sVoff} offen offset:1024")
        a("s_mov_b64 exec, -1")
        a(f"s_add_u32 s{sKoff}, s{sKoff}, 1280")
        a(f"s_add_u32 s{sVoff}, s{sVoff}, 2048")
    a(f"s_mov_b32 s{sKoff}, s{sKbase}")
    a(f"s_mov_b32 s{sVoff}, s{sVbase}")
    loads(0)
    for i in range(4):
        sb_, off = ("s27", 1280*i) if i < 2 else ("s28", 1280*(i-2))
        a(f"buffer_load_dwordx2 {vr(Q1[i],2)}, v{vK1o}, s[4:7], {sb_} offen offset:{off}")
        a(f"buffer_load_dwordx2 {vr(Q1[i]+2,2)}, v{vK1o}, s[4:7], {sb_} offen offset:{off+256}")
    a("s_mov_b64 exec, s[32:33]")
    for i in range(4):
        sb_, off = ("s27", 1280*i) if i < 2 else ("s28", 1280*(i-2))
        a(f"buffer_load_dwordx2 {vr(Q2[i],2)}, v{vK2o}, s[4:7], {sb_} offen offset:{off+1024}")
    a("s_mov_b64 exec, -1")
    for i in range(4):
        a(f"v_mov_b32 v{vM[i]}, 0xff800000")
    a(f"s_mov_b32 s{sNmax}, 1")
    a(f"s_mov_b32 s{sCnt}, 0")
    if ffn2:
        a("s_barrier")
    a("s_waitcnt vmcnt(0)")
    a(f"s_branch {name}_maxbody")
    a.label(f"{name}_maxpass")
    a(f"s_mov_b64 exec, s[{sHi}:{sHi+1}]")
    for i in range(4):
        a(f"v_mov_b32 v{Q2[i]}, 0")
        a(f"v_mov_b32 v{Q2[i]+1}, 0")
    a("s_mov_b64 exec, -1")
    for i in range(4):
        a(f"v_mov_b32 v{vM[i]}, 0xff800000")
    a(f"s_add_u32 s{sKoff}, s{sKbase}, {15*1280}")
    a(f"s_mov_b32 s{sCnt}, 0")
    a.label(f"{name}_maxloop")
    loadk(0)
    a("s_mov_b64 exec, -1")
    a(f"s_sub_u32 s{sKoff}, s{sKoff}, 1280")
    a("s_waitcnt vmcnt(0)")
    a.label(f"{name}_maxbody")
    for i in range(4):
        sb = O[i]
        a(f"v_mfma_f32_32x32x16_bf16 {vr(sb,16)}, {vr(K1(0),4)}, {vr(Q1[i],4)}, 0")
        a(f"v_mfma_f32_32x32x8_bf16 {vr(sb,16)}, {vr(K2(0),2)}, {vr(Q2[i],2)}, {vr(sb,16)}")
    a("s_nop 7")
    for i in range(4):
        sb = O[i]
        if i == 3: a("s_nop 7")
        for r in range(0, 16, 2):
            a(f"v_max3_f32 v{vM[i]}, v{sb+r}, v{sb+r+1}, v{vM[i]}")
    a(f"s_add_u32 s{sCnt}, s{sCnt}, 1")
    a(f"s_cmp_lt_u32 s{sCnt}, s{sNmax}")
    a(f"s_cbranch_scc1 {name}_maxloop")
    a(f"s_cmp_eq_u32 s{sNmax}, 1")
    a(f"s_cbranch_scc1 {name}_haveV")
    a(f"s_mov_b32 s{sKoff}, s{sKbase}")
    a(f"s_mov_b32 s{sVoff}, s{sVbase}")
    loads(0)
    a.label(f"{name}_haveV")
    TT = Sb[0]
    for i in range(4):
        a(f"v_mov_b32 v{TT+i}, v{vM[i]}")
    a("s_nop 1")
    for i in range(4):
        a(f"v_permlane32_swap_b32 v{TT+i}, v{vM[i]}")
    a("s_nop 1")
    for i in range(4):
        a(f"v_max_f32 v{vM[i]}, v{vM[i]}, v{TT+i}")
    for i in range(4):
        t0, t1, t2 = TT+4+3*i, TT+5+3*i, TT+6+3*i
        a(f"v_sub_f32 v{t0}, 0, v{vM[i]}")
        a(f"v_and_b32 v{t1}, 0xffff0000, v{t0}")
        a(f"v_sub_f32 v{t0}, v{t0}, v{t1}")
        a(f"v_and_b32 v{t2}, 0xffff0000, v{t0}")
        a(f"v_sub_f32 v{t0}, v{t0}, v{t2}")
        a(f"v_lshrrev_b32 v{t1}, 16, v{t1}")
        a(f"v_or_b32 v{t1}, v{t1}, v{t2}")
        a(f"v_lshrrev_b32 v{t0}, 16, v{t0}")
    a(f"s_mov_b64 exec, s[{sHi}:{sHi+1}]")
    for i in range(4):
        a(f"v_mov_b32 v{Q2[i]}, v{TT+5+3*i}")
        a(f"v_mov_b32 v{Q2[i]+1}, v{TT+4+3*i}")
    a("s_mov_b64 exec, s[34:35]")
    for r in range(4):
        a(f"v_mov_b32 v{V2(1)+r}, 0")
    a("s_mov_b64 exec, -1")
    a("s_waitcnt vmcnt(0)")
    def qk_a(s, q, sb): a(f"v_mfma_f32_32x32x16_bf16 {vr(sb,16)}, {vr(K1(s),4)}, {vr(Q1[q],4)}, 0")
    def qk_b(s, q, sb): a(f"v_mfma_f32_32x32x8_bf16 {vr(sb,16)}, {vr(K2(s),2)}, {vr(Q2[q],2)}, {vr(sb,16)}")
    def pv(s, q, sb, j):
        vv = V1(s) if j == 0 else V2(s)
        a(f"v_mfma_f32_32x32x16_bf16 {vr(O[q],16)}, {vr(vv,4)}, {vr(sb+8*j,4)}, {vr(O[q],16)}")
    def ex(sb, r): a(f"v_exp_f32 v{sb+r}, v{sb+r}")
    def cv(sb, p):
        base = sb + 8*(p//4)
        a(f"v_cvt_pk_bf16_f32 v{base + p%4}, v{sb+2*p}, v{sb+2*p+1}")
    qk_a(0, 0, Sb[0]); qk_b(0, 0, Sb[0])
    for i in range(4):
        for r in range(16):
            a(f"v_mov_b32 v{O[i]+r}, 0")
    for r in range(4):
        a(f"v_mov_b32 v{Sb[1]+8+r}, 0")
    a(f"s_mov_b32 s{sCnt}, 0")
    if "noprio" not in AEXP: a("s_setprio 2")
    if stamps: a("s_memtime s[42:43]\ns_waitcnt lgkmcnt(0)")
    a.label(f"{name}_loop")
    if "noprio" not in AEXP:
        for cval, pr in ((5, 1), (7, 0)):
            a(f"s_cmp_lg_u32 s{sCnt}, {cval}")
            a(f"s_cbranch_scc1 {name}_np{cval}")
            a(f"s_setprio {pr}")
            a.label(f"{name}_np{cval}")
    for t in range(2):
        for q in range(4):
            u = 4*t + q
            sb = Sb[u % 2]; so = Sb[(u+1) % 2]
            ps, pq = (t, q-1) if q > 0 else (1-t, 3)
            ns, nq = (t, q+1) if q < 3 else (1-t, 0)
            ex(sb, 0); ex(sb, 1)
            pv(ps, pq, so, 1)
            if q == 0:
                loads(1-t)
            for r in range(2, 6): ex(sb, r)
            if q == 3:
                a("s_waitcnt vmcnt(0)")
            qk_a(ns, nq, so)
            ex(sb, 6); ex(sb, 7)
            for p in range(4): cv(sb, p)
            qk_b(ns, nq, so)
            for r in range(8, 12): ex(sb, r)
            pv(t, q, sb, 0)
            for r in range(12, 16): ex(sb, r)
            for p in range(4, 8): cv(sb, p)
    a(f"s_add_u32 s{sCnt}, s{sCnt}, 1")
    a(f"s_cmp_lt_u32 s{sCnt}, 8")
    a(f"s_cbranch_scc1 {name}_loop")
    if stamps: a("s_memtime s[44:45]\ns_waitcnt lgkmcnt(0)")
    a("s_nop 1")
    pv(1, 3, Sb[1], 1)
    a("s_waitcnt vmcnt(0)")
    a("s_mov_b32 s26, 0x5d800000")
    a("s_nop 13")
    a(f"v_cmp_nlt_f32 s[28:29], v{O[0]+10}, s26")
    a(f"v_cmp_nlt_f32 s[30:31], v{O[1]+10}, s26")
    a("s_or_b64 s[28:29], s[28:29], s[30:31]")
    a(f"v_cmp_nlt_f32 s[30:31], v{O[2]+10}, s26")
    a("s_or_b64 s[28:29], s[28:29], s[30:31]")
    a(f"v_cmp_nlt_f32 s[30:31], v{O[3]+10}, s26")
    a("s_or_b64 s[28:29], s[28:29], s[30:31]")
    a("s_cmp_eq_u64 s[28:29], 0")
    a(f"s_cbranch_scc1 {name}_combine")
    a(f"s_cmp_eq_u32 s{sNmax}, 16")
    a(f"s_cbranch_scc1 {name}_combine")
    a(f"s_mov_b32 s{sNmax}, 16")
    a(f"s_branch {name}_maxpass")
    a.label(f"{name}_combine")
    LB = 0
    if ffn2:
        if ring <= 3:
            LB = 61568
        else:
            a("s_barrier")
    for i in range(4):
        a(f"v_mov_b32 v{O[i]+11}, v{vM[i]}")
    a(f"s_mul_i32 s26, s{sWave}, 12288")
    if LB: a(f"s_add_u32 s26, s26, {LB}")
    a(f"v_add_u32 v{vT0}, s26, v{vVo}")
    for i in range(4):
        for c in range(3):
            a(f"ds_write_b128 v{vT0}, {vr(O[i]+4*c,4)} offset:{(i*3+c)*1024}")
    a(f"s_mul_i32 s26, s{sQg}, 12288")
    a(f"s_mul_i32 s27, s{sKq}, 3072")
    a("s_add_u32 s26, s26, s27")
    if LB: a(f"s_add_u32 s26, s26, {LB}")
    a(f"v_add_u32 v{vT0}, s26, v{vVo}")
    a(f"v_add_u32 v{vT1}, 49152, v{vT0}")
    a("s_waitcnt lgkmcnt(0)")
    a("s_barrier")
    P = [O[0], O[1], O[2], O[3]]
    for k in range(4):
        for c in range(3):
            a(f"ds_read_b128 {vr(P[k]+4*c,4)}, v{vT0 if k < 2 else vT1} offset:{(k%2)*24576 + c*1024}")
    AD = Sb[0]
    a(f"v_and_b32 v{AD+8}, 31, v{vLane}")
    a(f"v_lshrrev_b32 v{AD+9}, 5, v{vLane}")
    a(f"v_lshlrev_b32 v{AD+8}, 4, v{AD+8}")
    a(f"v_mul_u32_u24 v{AD+9}, 10, v{AD+9}")
    a(f"s_mul_i32 s27, s{sHead}, 20")
    a(f"v_add_u32 v{AD+9}, s27, v{AD+9}")
    a(f"s_lshl_b32 s26, s{sQb}, 3")
    a(f"s_lshl_b32 s27, s{sQg}, 2")
    a("s_add_u32 s26, s26, s27")
    a(f"s_add_u32 s26, s26, s{sKq}")
    a("s_mul_i32 s26, s26, 40960")
    a(f"s_add_u32 s26, s26, {OFF_O}")
    for p in range(5):
        a(f"v_add_u32 v{AD+p}, {2*p}, v{AD+9}")
        a(f"v_lshrrev_b32 v{vT2}, 3, v{AD+p}")
        a(f"v_and_b32 v{AD+p}, 7, v{AD+p}")
        a(f"v_lshl_add_u32 v{AD+p}, v{AD+p}, 1, v{AD+8}")
        a(f"v_lshl_add_u32 v{AD+p}, v{vT2}, 9, v{AD+p}")
    a("s_waitcnt lgkmcnt(0)")
    a(f"v_max_f32 v{vT1}, v{P[0]+11}, v{P[1]+11}")
    a(f"v_max3_f32 v{vT1}, v{P[2]+11}, v{P[3]+11}, v{vT1}")
    for k in range(4):
        a(f"v_sub_f32 v{P[k]+11}, v{P[k]+11}, v{vT1}")
    for k in range(4):
        a(f"v_exp_f32 v{P[k]+11}, v{P[k]+11}")
    a("s_nop 0")
    for r in range(11):
        a(f"v_mul_f32 v{P[0]+r}, v{P[0]+r}, v{P[0]+11}")
    for k in range(1, 4):
        for r in range(11):
            a(f"v_fma_f32 v{P[0]+r}, v{P[k]+r}, v{P[k]+11}, v{P[0]+r}")
    a(f"v_rcp_f32 v{vT1}, v{P[0]+10}")
    a("s_nop 0")
    for r in range(10):
        a(f"v_mul_f32 v{P[0]+r}, v{P[0]+r}, v{vT1}")
    for p in range(5):
        a(f"v_cvt_pk_bf16_f32 v{P[1]+p}, v{P[0]+2*p}, v{P[0]+2*p+1}")
    for p in range(5):
        a(f"buffer_store_dword v{P[1]+p}, v{AD+p}, s[4:7], s26 offen sc1")
    if stamps:
        a("s_memtime s[46:47]\ns_memrealtime s[50:51]\ns_waitcnt lgkmcnt(0)\ns_sub_u32 s52, s50, s48")
        a("s_sub_u32 s42, s42, s40\ns_sub_u32 s44, s44, s40\ns_sub_u32 s46, s46, s40")
        if stamps == "abs": a("v_mov_b32 v8, s48\nv_mov_b32 v9, s50\nv_mov_b32 v10, s46\nv_mov_b32 v11, s46")
        else: a("v_mov_b32 v8, s52\nv_mov_b32 v9, s42\nv_mov_b32 v10, s44\nv_mov_b32 v11, s46")
        a(f"s_lshl_b32 s26, s2, 3\ns_add_u32 s26, s26, s{sWave}\ns_lshl_b32 s26, s26, 4\ns_add_u32 s26, s26, {(24<<20) + (65536 if stamps == 'abs' else 0)}")
        a("v_mov_b32 v12, 0")
        a("s_mov_b64 exec, 1")
        a("buffer_store_dwordx4 v[8:11], v12, s[4:7], s26 offen")
    a.label(f"{name}_end")
    a("s_endpgm")
    lds = 98304 + LB
    if ffn2:
        a.label(f"{name}_ffn2")
        a("s_waitcnt lgkmcnt(0)")
        lds = max(lds, gen_ffn2_waves(a, name, ring))
    return NV, lds
```

```python
from genlib import *
import struct, os
EXP = os.environ.get("P1EXP", "")
STP = os.environ.get("P1ST", "sc1")
def f2u(x): return struct.unpack("<I", struct.pack("<f", x))[0]

CSCALE = (20 ** -0.5) * 1.4426950408889634
STAGE = 49152
SCR = 3*STAGE
L_ROW, L_CS, L_B1, L_TS = 4096, 4608, 5120, 5632
OFF_RST = 23 << 20
OFF_CSP = (23 << 20) + 65536

def dpp_reduce(a, regs):
    for mod in ("row_shr:1", "row_shr:2", "row_shr:4", "row_shr:8"):
        a("s_nop 1")
        for r in regs:
            a(f"v_add_f32_dpp v{r}, v{r}, v{r} {mod} row_mask:0xf bank_mask:0xf bound_ctrl:0")
    a("s_nop 1")
    for r in regs:
        a(f"v_add_f32_dpp v{r}, v{r}, v{r} row_bcast:15 row_mask:0xa bank_mask:0xf")
    a("s_nop 1")
    for r in regs:
        a(f"v_add_f32_dpp v{r}, v{r}, v{r} row_bcast:31 row_mask:0xc bank_mask:0xf")

def gen_p1(a, name="p1_kernel", stamps=False):
    kernel_header(a, name)
    sX, sW, sWS, sB1, sDbg = 4, 8, 12, 16, 76
    sWave, sRb, sCb, sXk, sWk = 20, 21, 22, 24, 25
    sM0x, sM0w = 27, 28
    sCol, sTok, sPar, sRot = 33, 34, 35, 23
    sT = [29, 30, 31, 32]
    vCs = 226
    sLo = 44
    vLane, vR, vH = 1, 2, 3
    vXd = [4, 5, 6, 7]
    vWd = [8, 9]
    vXa = [[10+4*s+j for j in range(4)] for s in range(3)]
    vWa = [[22+4*s+t for t in range(4)] for s in range(3)]
    vT = list(range(34, 48))
    XF = [48, 52]
    WF = [[56 + 4*t for t in range(4)], [72 + 4*t for t in range(4)]]
    ACC = [88 + 16*t for t in range(4)]
    EP = 152
    SL = 152
    vRS = 208
    vCP = 210
    NV = 228
    t0, t1, t2, t3 = vT[:4]

    a("s_cmp_ge_u32 s2, 256")
    a(f"s_cbranch_scc1 {name}_end")
    a(f"s_load_dwordx4 s[36:39], s[0:1], {KA['x']}")
    a(f"s_load_dwordx4 s[40:43], s[0:1], {KA['w1']}")
    a(f"s_load_dwordx4 s[72:75], s[0:1], {KA['dbg']}")
    if stamps: a("s_memtime s[60:61]\ns_memrealtime s[68:69]")
    a("v_lshrrev_b32 v4, 6, v0")
    a(f"v_and_b32 v{vLane}, 63, v0")
    a("s_and_b32 s48, s2, 7")
    a(f"v_readfirstlane_b32 s{sWave}, v4")
    a("s_lshr_b32 s49, s2, 3")
    a("s_and_b32 s50, s48, 1")
    a("s_lshr_b32 s51, s48, 1")
    a("s_and_b32 s52, s49, 3")
    a("s_lshl_b32 s50, s50, 2")
    a(f"s_add_u32 s{sRb}, s50, s52")
    a("s_lshr_b32 s52, s49, 2")
    a("s_lshl_b32 s51, s51, 3")
    a(f"s_add_u32 s{sCb}, s51, s52")
    a(f"v_and_b32 v{vR}, 31, v{vLane}")
    a(f"v_lshrrev_b32 v{vH}, 5, v{vLane}")
    a(f"s_mov_b32 s{sLo}, -1")
    a(f"s_mov_b32 s{sLo+1}, 0")
    a(f"s_lshl_b32 s{sTok}, s{sRb}, 8")
    a(f"s_lshl_b32 s48, s{sCb}, 3")
    a(f"s_add_u32 s48, s48, s{sTok}")
    a(f"s_add_u32 s48, s48, s{sWave}")
    a("s_mul_i32 s53, s48, 1280")
    a(f"s_lshl_b32 s48, s{sWave}, 5")
    a(f"s_add_u32 s{sTok}, s{sTok}, s48")
    a(f"v_lshlrev_b32 v{t0}, 4, v{vLane}")
    a(f"v_lshlrev_b32 v{t1}, 2, v{vLane}")
    a("s_waitcnt lgkmcnt(0)")
    make_srd(a, sX, 36, S*D*2)
    a(f"buffer_load_dwordx4 {vr(SL,4)}, v{t0}, s[{sX}:{sX+3}], s53 offen")
    a(f"buffer_load_dword v{SL+4}, v{t1}, s[{sX}:{sX+3}], s53 offen offset:1024")
    make_srd(a, sWS, 74, WS_BYTES)
    make_srd(a, sB1, 42, F*2)
    make_srd(a, sDbg, 72, 256)
    a(f"v_lshrrev_b32 v{t0}, 3, v{vLane}")
    a(f"v_and_b32 v{t1}, 7, v{vLane}")
    for n in range(4):
        a(f"v_add_u32 v{t2}, {8*n}, v{t0}")
        a(f"v_lshrrev_b32 v{t3}, 1, v{t2}")
        a(f"v_and_b32 v{t3}, 7, v{t3}")
        a(f"v_xor_b32 v{t3}, v{t3}, v{t1}")
        a(f"v_mul_u32_u24 v{t2}, 1280, v{t2}")
        a(f"v_lshl_add_u32 v{vXd[n]}, v{t3}, 4, v{t2}")
    a(f"s_mul_i32 s{sXk}, s{sTok}, 1280")
    a(f"s_lshl_b32 s{sM0x}, s{sWave}, 12")
    a(f"s_cmp_eq_u32 s{sCb}, 31")
    a(f"s_cbranch_scc1 {name}_S")
    a(f"s_cmp_ge_u32 s{sCb}, 15")
    a(f"s_cbranch_scc1 {name}_F")
    make_srd(a, sW, 38, D*3*D*2)
    a(f"s_cmp_ge_u32 s{sCb}, 10")
    a(f"s_cbranch_scc1 {name}_V")
    body(a, name, "QK", locals())
    a.label(f"{name}_V")
    body(a, name, "V", locals())
    a.label(f"{name}_F")
    make_srd(a, sW, 40, D*F*2)
    body(a, name, "F", locals())
    a.label(f"{name}_S")
    g = type("G", (), locals())
    a("s_waitcnt vmcnt(0)")
    row_stats(a, g)
    a("s_waitcnt lgkmcnt(0)")
    a("s_barrier")
    a(f"s_cmp_lg_u32 s{sWave}, 0")
    a(f"s_cbranch_scc1 {name}_end")
    publish_rows(a, g)
    a("s_waitcnt vmcnt(0)")
    signal(a, g)
    a.label(f"{name}_end")
    a("s_endpgm")
    return NV, SCR + 7680

def row_stats(a, g):
    SL = g.SL; T = SL + 16
    for i in range(5):
        a(f"v_and_b32 v{T+2*i}, 0xffff0000, v{SL+i}")
        a(f"v_lshlrev_b32 v{T+2*i+1}, 16, v{SL+i}")
    s, q = T+10, T+11
    a(f"v_add_f32 v{s}, v{T}, v{T+1}")
    a(f"v_mul_f32 v{q}, v{T}, v{T}")
    a(f"v_fmac_f32 v{q}, v{T+1}, v{T+1}")
    for i in range(2, 10):
        a(f"v_add_f32 v{s}, v{s}, v{T+i}")
        a(f"v_fmac_f32 v{q}, v{T+i}, v{T+i}")
    dpp_reduce(a, [s, q])
    a(f"s_lshl_b32 s48, s{g.sWave}, 3")
    a(f"v_mov_b32 v{T}, s48")
    a(f"v_add_u32 v{T}, {SCR+L_ROW}, v{T}")
    a("s_mov_b32 s48, 0")
    a("s_mov_b32 s49, 0x80000000")
    a("s_mov_b64 exec, s[48:49]")
    a(f"ds_write_b64 v{T}, {vr(s,2)}")
    a("s_mov_b64 exec, -1")

def publish_rows(a, g):
    T = g.SL + 16
    a(f"v_lshlrev_b32 v{T}, 3, v{g.vLane}")
    a(f"v_add_u32 v{T+1}, {SCR+L_ROW}, v{T}")
    a("s_mov_b64 exec, 0xff")
    a(f"ds_read_b64 {vr(T+2,2)}, v{T+1}")
    a(f"s_lshl_b32 s48, s{g.sRb}, 11")
    a(f"s_lshl_b32 s49, s{g.sCb}, 6")
    a("s_add_u32 s48, s48, s49")
    a(f"s_add_u32 s48, s48, {OFF_RST}")
    a("s_waitcnt lgkmcnt(0)")
    a(f"buffer_store_dwordx2 {vr(T+2,2)}, v{T}, s[{g.sWS}:{g.sWS+3}], s48 offen sc0 sc1")
    a("s_mov_b64 exec, -1")

def signal(a, g):
    T = g.SL + 16
    a("s_mov_b64 exec, 1")
    a(f"v_mov_b32 v{T}, 1")
    a(f"v_mov_b32 v{T+1}, 0")
    a(f"s_lshl_b32 s48, s{g.sRb}, 5")
    a(f"s_add_u32 s48, s48, s{g.sCb}")
    a(f"buffer_store_byte v{T}, v{T+1}, s[{g.sDbg}:{g.sDbg+3}], s48 offen sc0 sc1")
    a("s_mov_b64 exec, -1")

def body(a, name, typ, L):
    g = type("G", (), L)
    NT = 3 if typ == "F" else 4
    rowb = 3072 if typ == "F" else 3840
    vT = g.vT; t0, t1, t2, t3, t4, t5 = vT[:6]
    vLane, vR, vH = g.vLane, g.vR, g.vH
    sWave = g.sWave; SL = g.SL
    if typ == "F":
        a(f"s_sub_u32 s48, s{g.sCb}, 15")
        a(f"s_mul_i32 s{g.sCol}, s48, 96")
    else:
        a(f"s_lshl_b32 s{g.sCol}, s{g.sCb}, 7")
    for t in range(NT):
        a(f"s_mov_b32 s{g.sT[t]}, {t}")
    a(f"s_mul_i32 s48, s{g.sRb}, 80")
    a(f"s_mul_i32 s49, s{sWave}, 10")
    a("s_add_u32 s48, s48, s49")
    a(f"s_mul_i32 s48, s48, {rowb}")
    a(f"s_lshl_b32 s49, s{g.sCol}, 1")
    a("s_add_u32 s48, s48, s49")
    a(f"v_lshlrev_b32 v{t0}, 2, v{vLane}")
    for i in range(10):
        a(f"buffer_load_dword v{SL+6+i}, v{t0}, s[{g.sW}:{g.sW+3}], s48 offen")
        a(f"s_add_u32 s48, s48, {rowb}")
    if typ == "F":
        a(f"buffer_load_dword v{SL+5}, v{t0}, s[{g.sB1}:{g.sB1+3}], s49 offen")
    if NT == 4:
        a(f"v_lshrrev_b32 v{t0}, 4, v{vLane}")
        a(f"v_bfe_u32 v{t1}, v{vLane}, 2, 2")
        a(f"v_xor_b32 v{t1}, v{t1}, v{t0}")
        a(f"v_and_b32 v{t2}, 3, v{vLane}")
        a(f"v_mul_u32_u24 v{t0}, {rowb}, v{t0}")
        a(f"v_lshl_add_u32 v{t0}, v{t1}, 6, v{t0}")
        a(f"v_lshl_add_u32 v{g.vWd[0]}, v{t2}, 4, v{t0}")
        a(f"v_add_u32 v{g.vWd[1]}, {4*rowb}, v{g.vWd[0]}")
        a(f"s_lshl_b32 s{g.sM0w}, s{sWave}, 11")
    else:
        for n in range(2):
            a(f"v_add_u32 v{t0}, {64*n}, v{vLane}")
            a(f"v_mul_u32_u24 v{t1}, 171, v{t0}")
            a(f"v_lshrrev_b32 v{t1}, 11, v{t1}")
            a(f"v_mul_u32_u24 v{t2}, 12, v{t1}")
            a(f"v_sub_u32 v{t2}, v{t0}, v{t2}")
            a(f"v_mul_u32_u24 v{t1}, {rowb}, v{t1}")
            a(f"v_lshl_add_u32 v{g.vWd[n]}, v{t2}, 4, v{t1}")
        a(f"s_mul_i32 s{g.sM0w}, s{sWave}, 1536")
    a(f"s_add_u32 s{g.sM0w}, s{g.sM0w}, 32768")
    a(f"s_mul_i32 s{g.sWk}, s{sWave}, {8*rowb}")
    a(f"s_lshl_b32 s48, s{g.sCol}, 1")
    a(f"s_add_u32 s{g.sWk}, s{g.sWk}, s48")

    ndma = 6
    def dma_m0(c, n):
        st = (c % 3) * STAGE
        if n < 4: a(f"s_add_u32 m0, s{g.sM0x}, {st + n*1024}")
        else: a(f"s_add_u32 m0, s{g.sM0w}, {st + (n-4)*1024}")
    def dma_ld(c, n):
        if n < 4:
            a(f"buffer_load_dwordx4 v{g.vXd[n]}, s[{g.sX}:{g.sX+3}], s{g.sXk} offen lds")
            if n == 3: a(f"s_add_u32 s{g.sXk}, s{g.sXk}, 128")
        else:
            if NT == 3 and n == 5: a(f"s_mov_b64 exec, s[{g.sLo}:{g.sLo+1}]")
            a(f"buffer_load_dwordx4 v{g.vWd[n-4]}, s[{g.sW}:{g.sW+3}], s{g.sWk} offen lds")
            if NT == 3 and n == 5: a("s_mov_b64 exec, -1")
            if n == 5: a(f"s_add_u32 s{g.sWk}, s{g.sWk}, {64*rowb}")
    def dma(c):
        for n in range(6):
            dma_m0(c, n); a("s_nop 0"); dma_ld(c, n)
    dma(0); dma(1)
    wstride = 256 if NT == 4 else 192
    a(f"v_lshrrev_b32 v{t0}, 1, v{vR}")
    a(f"v_and_b32 v{t0}, 7, v{t0}")
    a(f"s_lshl_b32 s48, s{sWave}, 12")
    a(f"v_lshlrev_b32 v{t1}, 7, v{vR}")
    a(f"v_add_u32 v{t1}, s48, v{t1}")
    for j in range(4):
        a(f"v_add_u32 v{t2}, {2*j}, v{vH}")
        a(f"v_xor_b32 v{t2}, v{t2}, v{t0}")
        a(f"v_lshl_add_u32 v{g.vXa[0][j]}, v{t2}, 4, v{t1}")
        for s in (1, 2): a(f"v_add_u32 v{g.vXa[s][j]}, {s*STAGE}, v{g.vXa[0][j]}")
    a(f"v_bfe_u32 v{t0}, v{vLane}, 2, 2")
    a(f"v_and_b32 v{t1}, 3, v{vLane}")
    a(f"v_bfe_u32 v{t2}, v{vLane}, 4, 1")
    a(f"v_lshl_add_u32 v{t3}, v{vH}, 3, v{t0}")
    a(f"v_mul_u32_u24 v{t3}, {wstride}, v{t3}")
    a(f"v_lshl_add_u32 v{t3}, v{t2}, 5, v{t3}")
    a(f"v_lshl_add_u32 v{t3}, v{t1}, 3, v{t3}")
    a(f"v_add_u32 v{t3}, 32768, v{t3}")
    for t in range(NT):
        if NT == 4:
            a(f"v_xor_b32 v{t4}, s{g.sT[t]}, v{t0}")
            a(f"v_lshl_add_u32 v{g.vWa[0][t]}, v{t4}, 6, v{t3}")
        else:
            a(f"s_lshl_b32 s48, s{g.sT[t]}, 6")
            a(f"v_add_u32 v{g.vWa[0][t]}, s48, v{t3}")
        for s in (1, 2): a(f"v_add_u32 v{g.vWa[s][t]}, {s*STAGE}, v{g.vWa[0][t]}")
    for t in range(NT):
        for r in range(16):
            a(f"v_mov_b32 v{g.ACC[t]+r}, 0")
    T = SL + 16
    a(f"s_waitcnt vmcnt({2*ndma})")
    row_stats(a, g)
    for i in range(10):
        if i == 0:
            a(f"v_lshlrev_b32 v{T}, 16, v{SL+6+i}")
            a(f"v_and_b32 v{T+1}, 0xffff0000, v{SL+6+i}")
        else:
            a(f"v_lshlrev_b32 v{T+2}, 16, v{SL+6+i}")
            a(f"v_and_b32 v{T+3}, 0xffff0000, v{SL+6+i}")
            a(f"v_pk_add_f32 {vr(T,2)}, {vr(T,2)}, {vr(T+2,2)}")
    a(f"s_lshl_b32 s48, s{sWave}, 9")
    a(f"v_lshlrev_b32 v{T+4}, 3, v{vLane}")
    a(f"v_add_u32 v{T+4}, {SCR}, v{T+4}")
    a(f"v_add_u32 v{T+5}, s48, v{T+4}")
    a(f"ds_write_b64 v{T+5}, {vr(T,2)}")
    if typ == "F":
        a(f"v_and_b32 v{T+3}, 0xffff0000, v{SL+5}")
        a(f"v_lshlrev_b32 v{T+2}, 16, v{SL+5}")
        a(f"ds_write_b64 v{T+4}, {vr(T+2,2)} offset:{L_B1}")
    cnt = [0]

    nrd = 1 + 2*NT
    def reads(c, j):
        if "noread" in EXP: return
        b = j % 2; s = c % 3
        a(f"ds_read_b128 {vr(g.XF[b],4)}, v{g.vXa[s][j]}")
        for t in range(NT):
            for rd in range(2):
                a(f"ds_read_b64_tr_b16 {vr(g.WF[b][t]+2*rd,2)}, v{g.vWa[s][t]} offset:{(16*j+4*rd)*wstride}")
    def mfmas(j, dm=None):
        b = j % 2
        for t in range(NT):
            k = None
            if dm and t in (0, 2): k = dm[1][t//2]
            if k is not None: dma_m0(dm[0], k)
            if "nomfma" in EXP: a("s_nop 0")
            elif typ == "V":
                a(f"v_mfma_f32_32x32x16_bf16 {vr(g.ACC[t],16)}, {vr(g.XF[b],4)}, {vr(g.WF[b][t],4)}, {vr(g.ACC[t],16)}")
            else:
                a(f"v_mfma_f32_32x32x16_bf16 {vr(g.ACC[t],16)}, {vr(g.WF[b][t],4)}, {vr(g.XF[b],4)}, {vr(g.ACC[t],16)}")
            if k is not None: dma_ld(dm[0], k)
            if False:
                lab = f"{name}_{typ}_cs{cnt[0]}"; cnt[0] += 1
                a(f"s_cmp_lg_u32 s{g.sPar}, {j % 2}")
                a(f"s_cbranch_scc1 {lab}")
                for r in range(4):
                    a(f"v_lshlrev_b32 v{T+4+2*r}, 16, v{g.WF[b][0]+r}")
                    a(f"v_and_b32 v{T+5+2*r}, 0xffff0000, v{g.WF[b][0]+r}")
                for r in range(4):
                    a(f"v_pk_add_f32 {vr(g.vCs,2)}, {vr(g.vCs,2)}, {vr(T+4+2*r,2)}")
                a.label(lab)
    a(f"s_waitcnt vmcnt({ndma}) lgkmcnt(0)")
    a("s_barrier")
    if g.stamps: a("s_memtime s[64:65]\ns_waitcnt lgkmcnt(0)")
    reads(0, 0)
    a(f"s_cmp_lg_u32 s{sWave}, 0")
    a(f"s_cbranch_scc1 {name}_{typ}_np")
    a(f"v_lshlrev_b32 v{T}, 3, v{vLane}")
    a(f"v_add_u32 v{T+1}, {SCR}, v{T}")
    for w in range(8):
        a(f"ds_read_b64 {vr(g.vCP+2*w,2)}, v{T+1} offset:{512*w}")
    a("s_waitcnt lgkmcnt(0)")
    for w in range(1, 8):
        a(f"v_pk_add_f32 {vr(g.vCP,2)}, {vr(g.vCP,2)}, {vr(g.vCP+2*w,2)}")
    a(f"s_lshl_b32 s48, s{g.sCb}, 3")
    a(f"s_add_u32 s48, s48, s{g.sRb}")
    a("s_lshl_b32 s48, s48, 9")
    a(f"s_add_u32 s48, s48, {OFF_CSP}")
    a(f"buffer_store_dwordx2 {vr(g.vCP,2)}, v{T}, s[{g.sWS}:{g.sWS+3}], s48 offen sc0 sc1")
    publish_rows(a, g)
    a.label(f"{name}_{typ}_np")
    for c in range(10):
        dprev = (c + 2) if (1 <= c and c + 2 <= 9) else None
        for j in range(3):
            reads(c, j+1)
            a(f"s_waitcnt lgkmcnt({nrd})")
            if c == 0: mfmas(j, (2, [2*j, 2*j+1]))
            else: mfmas(j, (dprev, [2+2*j, 3+2*j]) if (dprev is not None and j < 2) else None)
        if c < 9:
            a(f"s_waitcnt vmcnt({ndma if c+2 <= 9 else 0}) lgkmcnt(0)")
            if c == 0:
                a(f"s_cmp_lg_u32 s{sWave}, 0")
                a(f"s_cbranch_scc1 {name}_{typ}_ns")
                signal(a, g)
                a.label(f"{name}_{typ}_ns")
            if c == 8:
                a(f"s_cmp_lg_u32 s{sWave}, 1")
                a(f"s_cbranch_scc1 {name}_{typ}_nt")
                for w in range(1, 8):
                    a(f"v_pk_add_f32 {vr(g.vCP,2)}, {vr(g.vCP,2)}, {vr(g.vCP+2*w,2)}")
                a(f"v_add_u32 v{T+3}, {SCR+L_CS}, v{T+3}")
                a(f"ds_write_b64 v{T+3}, {vr(g.vCP,2)}")
                a("s_waitcnt lgkmcnt(0)")
                a.label(f"{name}_{typ}_nt")
            if c == 6:
                a(f"s_cmp_lg_u32 s{sWave}, 0")
                a(f"s_cbranch_scc1 {name}_{typ}_pd")
                a("s_mov_b32 s54, 0")
                a.label(f"{name}_{typ}_pl")
                a(f"v_and_b32 v{T+1}, v{T+1}, v{T+4}")
                a(f"v_cmp_eq_u32 vcc, v{T+1}, v{T+4}")
                a("s_add_u32 s54, s54, 1")
                a("s_nop 0")
                a("s_cmp_eq_u64 vcc, -1")
                a(f"s_cbranch_scc1 {name}_{typ}_pd")
                a("s_cmp_gt_u32 s54, 0x40000")
                a(f"s_cbranch_scc1 {name}_{typ}_pd")
                a(f"buffer_load_dword v{T+1}, v{T+2}, s[{g.sDbg}:{g.sDbg+3}], 0 offen sc0 sc1")
                a("s_waitcnt vmcnt(0)")
                a(f"s_branch {name}_{typ}_pl")
                a.label(f"{name}_{typ}_pd")
            a("s_barrier")
            if c == 4:
                a(f"s_cmp_lg_u32 s{sWave}, 0")
                a(f"s_cbranch_scc1 {name}_{typ}_nq")
                a(f"v_lshlrev_b32 v{T+2}, 2, v{vLane}")
                a(f"v_lshrrev_b32 v{T+3}, 3, v{vLane}")
                a(f"v_cmp_eq_u32 vcc, s{g.sRb}, v{T+3}")
                a(f"v_mov_b32 v{T+5}, 0x01010101")
                a(f"v_and_b32 v{T+3}, 7, v{vLane}")
                a(f"v_cndmask_b32 v{T+4}, 0, v{T+5}, vcc")
                a(f"s_lshr_b32 s48, s{g.sCb}, 2")
                a(f"s_and_b32 s49, s{g.sCb}, 3")
                a("s_lshl_b32 s49, s49, 3")
                a("s_lshl_b32 s49, 1, s49")
                a(f"v_cmp_eq_u32 vcc, s48, v{T+3}")
                a(f"v_mov_b32 v{T+5}, s49")
                a("s_nop 0")
                a(f"v_cndmask_b32 v{T+5}, 0, v{T+5}, vcc")
                a(f"v_or_b32 v{T+4}, v{T+4}, v{T+5}")
                a(f"buffer_load_dword v{T+1}, v{T+2}, s[{g.sDbg}:{g.sDbg+3}], 0 offen sc0 sc1")
                a.label(f"{name}_{typ}_nq")
            if c == 6:
                a(f"s_lshl_b32 s48, s{g.sTok}, 3")
                a(f"s_add_u32 s48, s48, {OFF_RST}")
                a(f"v_lshlrev_b32 v{T}, 3, v{vR}")
                a(f"buffer_load_dwordx2 {vr(g.vRS,2)}, v{T}, s[{g.sWS}:{g.sWS+3}], s48 offen sc0 sc1")
                a(f"s_cmp_lg_u32 s{sWave}, 1")
                a(f"s_cbranch_scc1 {name}_{typ}_nf")
                a(f"s_lshl_b32 s48, s{g.sCb}, 12")
                a(f"s_add_u32 s48, s48, {OFF_CSP}")
                a(f"v_lshlrev_b32 v{T+3}, 3, v{vLane}")
                for w in range(8):
                    a(f"buffer_load_dwordx2 {vr(g.vCP+2*w,2)}, v{T+3}, s[{g.sWS}:{g.sWS+3}], s48 offen offset:{512*w} sc0 sc1")
                a.label(f"{name}_{typ}_nf")
            reads(c+1, 0)
            mfmas(3, (c+3, [0, 1]) if c + 3 <= 9 else None)
        else:
            a("s_waitcnt lgkmcnt(0)")
            mfmas(3)
    if g.stamps: a("s_memtime s[66:67]\ns_waitcnt lgkmcnt(0)")
    EP = g.EP
    vMean, vVar = g.vRS, g.vRS+1
    vRs, vMr = vT[8], vT[10]
    a(f"v_mul_f32 v{vMean}, {f2u(1.0/640):#x}, v{vMean}")
    a(f"v_mul_f32 v{vVar}, {f2u(1.0/640):#x}, v{vVar}")
    a(f"v_fma_f32 v{vVar}, -v{vMean}, v{vMean}, v{vVar}")
    a(f"v_max_f32 v{vVar}, 0, v{vVar}")
    a(f"v_add_f32 v{t1}, {f2u(1e-5):#x}, v{vVar}")
    a(f"v_rsq_f32 v{vRs}, v{t1}")
    a("s_nop 0")
    if typ == "F":
        a(f"v_mul_f32 v{t1}, v{vRs}, v{vRs}")
        a(f"v_mul_f32 v{t1}, v{t1}, v{vVar}")
        a(f"v_add_f32 v{t1}, {f2u(1e-5):#x}, v{t1}")
        a(f"v_rsq_f32 v{t1}, v{t1}")
        a("s_nop 0")
        a(f"v_mul_f32 v{vRs}, v{vRs}, v{t1}")
    if typ == "QK":
        a(f"s_cmp_lt_u32 s{g.sCb}, 5")
        a(f"s_cselect_b32 s48, {f2u(CSCALE):#x}, 1.0")
        a(f"v_mul_f32 v{vRs}, s48, v{vRs}")
    a(f"v_mul_f32 v{vMr}, v{vMean}, v{vRs}")
    a(f"v_sub_f32 v{vMr}, 0, v{vMr}")
    a(f"v_mov_b32 v{vRs+1}, v{vRs}")
    a(f"v_mov_b32 v{vMr+1}, v{vMr}")
    if typ == "V":
        a(f"s_lshl_b32 s48, s{sWave}, 8")
        a(f"s_add_u32 s48, s48, {SCR+L_TS}")
        a(f"v_lshl_add_u32 v{t1}, v{vR}, 2, s48")
        a(f"ds_write_b32 v{t1}, v{vRs}")
        a(f"ds_write_b32 v{t1}, v{vMr} offset:128")
        RS, MR = EP, EP+16
        a(f"v_lshl_add_u32 v{t1}, v{vH}, 4, s48")
        a("s_waitcnt lgkmcnt(0)")
        for q in range(4):
            a(f"ds_read_b128 {vr(RS+4*q,4)}, v{t1} offset:{32*q}")
            a(f"ds_read_b128 {vr(MR+4*q,4)}, v{t1} offset:{128+32*q}")
        CSv = EP+32
        a(f"v_lshlrev_b32 v{t2}, 2, v{vR}")
        a(f"v_add_u32 v{t2}, {SCR+L_CS}, v{t2}")
        for t in range(NT):
            a(f"s_lshl_b32 s50, s{g.sT[t]}, 7")
            a(f"v_add_u32 v{t3}, s50, v{t2}")
            a(f"ds_read_b32 v{CSv+2*t}, v{t3}")
        a(f"s_lshl_b32 s49, s{g.sTok}, 6")
        a(f"s_add_u32 s49, s49, {OFF_V}")
        a(f"s_sub_u32 s48, s{g.sCol}, 1280")
        AD = [vT[4], vT[5], vT[6], vT[7]]
        for t in range(NT):
            a(f"s_lshl_b32 s50, s{g.sT[t]}, 5")
            a("s_add_u32 s50, s50, s48")
            a(f"v_add_u32 v{t0}, s50, v{vR}")
            a(f"v_mul_u32_u24 v{t1}, 3277, v{t0}")
            a(f"v_lshrrev_b32 v{t1}, 16, v{t1}")
            a(f"v_mul_u32_u24 v{t2}, 20, v{t1}")
            a(f"v_sub_u32 v{t2}, v{t0}, v{t2}")
            a(f"v_cmp_lt_u32 vcc, 9, v{t2}")
            a(f"v_lshlrev_b32 v{t1}, 17, v{t1}")
            a(f"v_lshl_add_u32 v{t1}, v{vH}, 9, v{t1}")
            a(f"v_cndmask_b32 v{t3}, 0, 1, vcc")
            a(f"v_mul_u32_u24 v{t0}, 10, v{t3}")
            a(f"v_sub_u32 v{t2}, v{t2}, v{t0}")
            a(f"v_lshrrev_b32 v{t0}, 2, v{t2}")
            a(f"v_and_b32 v{t2}, 3, v{t2}")
            a(f"v_lshl_add_u32 v{t2}, v{t0}, 3, v{t2}")
            a(f"v_lshl_add_u32 v{t2}, v{t3}, 2, v{t2}")
            a(f"v_lshl_add_u32 v{AD[t]}, v{t2}, 4, v{t1}")
        a("s_waitcnt lgkmcnt(0)")
        PK = EP+40
        for t in range(NT):
            A = g.ACC[t]
            a(f"v_mov_b32 v{CSv+2*t+1}, v{CSv+2*t}")
            for r in range(0, 16, 2):
                a(f"v_pk_mul_f32 {vr(A+r,2)}, {vr(A+r,2)}, {vr(RS+r,2)}")
                a(f"v_pk_fma_f32 {vr(A+r,2)}, {vr(MR+r,2)}, {vr(CSv+2*t,2)}, {vr(A+r,2)}")
            pk = PK + 8*(t % 2)
            for p in range(8):
                a(f"v_cvt_pk_bf16_f32 v{pk+p}, v{A+2*p}, v{A+2*p+1}")
            a(f"buffer_store_dwordx4 {vr(pk,4)}, v{AD[t]}, s[{g.sWS}:{g.sWS+3}], s49 offen {STP}")
            a(f"buffer_store_dwordx4 {vr(pk+4,4)}, v{AD[t]}, s[{g.sWS}:{g.sWS+3}], s49 offen offset:1024 {STP}")
    else:
        CSr, B1r = EP, EP+16
        PK = EP+32
        if typ == "QK":
            a(f"s_cmp_lt_u32 s{g.sCb}, 5")
            a(f"s_cselect_b32 s49, {OFF_Q}, {OFF_K}")
            a(f"s_cselect_b32 s50, 0, 640")
            a(f"s_mul_i32 s51, s{g.sTok}, 40")
            a("s_add_u32 s49, s49, s51")
            a(f"s_sub_u32 s50, s{g.sCol}, s50")
            a(f"v_lshlrev_b32 v{t5}, 3, v{vR}")
            a(f"s_mov_b32 s52, {81920 - 1280}")
            a(f"v_lshl_add_u32 v{t4}, v{vH}, 2, s50")
        else:
            a(f"s_mul_i32 s49, s{g.sTok}, 3072")
            a(f"s_add_u32 s49, s49, {OFF_H}")
            a(f"s_lshl_b32 s51, s{g.sCol}, 6")
            a("s_add_u32 s49, s49, s51")
            a(f"v_lshlrev_b32 v{t5}, 4, v{vLane}")
            k1 = -2.0 * 0.7978845608028654 * 1.4426950408889634
            k2 = k1 * 0.044715
            K1, K2, ONE = vT[12], EP+48, EP+50
            for r, val in ((K1, k1), (K2, k2), (ONE, 1.0)):
                a(f"v_mov_b32 v{r}, {f2u(val):#x}")
                a(f"v_mov_b32 v{r+1}, {f2u(val):#x}")
        for t in range(NT):
            a(f"s_lshl_b32 s48, s{g.sT[t]}, 7")
            a(f"s_add_u32 s48, s48, {SCR}")
            a(f"v_lshl_add_u32 v{t0}, v{vH}, 4, s48")
            for q in range(4):
                a(f"ds_read_b128 {vr(CSr+4*q,4)}, v{t0} offset:{L_CS+32*q}")
                if typ == "F":
                    a(f"ds_read_b128 {vr(B1r+4*q,4)}, v{t0} offset:{L_B1+32*q}")
            A = g.ACC[t]
            pk = PK + 8*(t % 2)
            if typ == "QK":
                AD = [vT[1], vT[2], vT[6], vT[7]]
                for q in range(4):
                    a(f"s_lshl_b32 s48, s{g.sT[t]}, 5")
                    a(f"s_add_u32 s48, s48, {8*q}")
                    a(f"v_add_u32 v{t3}, s48, v{t4}")
                    a(f"v_mul_u32_u24 v{AD[q]}, 3277, v{t3}")
                    a(f"v_lshrrev_b32 v{AD[q]}, 16, v{AD[q]}")
                    a(f"v_lshl_add_u32 v{t3}, v{t3}, 6, v{t5}")
                    a(f"v_mad_u32_u24 v{AD[q]}, v{AD[q]}, s52, v{t3}")
                for r in range(0, 16, 2):
                    a(f"v_pk_mul_f32 {vr(A+r,2)}, {vr(A+r,2)}, {vr(vRs,2)}")
                a("s_waitcnt lgkmcnt(0)")
                for r in range(0, 16, 2):
                    a(f"v_pk_fma_f32 {vr(A+r,2)}, {vr(CSr+r,2)}, {vr(vMr,2)}, {vr(A+r,2)}")
                for p in range(8):
                    a(f"v_cvt_pk_bf16_f32 v{pk+p}, v{A+2*p}, v{A+2*p+1}")
                for q in range(4):
                    a(f"buffer_store_dwordx2 {vr(pk+2*q,2)}, v{AD[q]}, s[{g.sWS}:{g.sWS+3}], s49 offen {STP}")
            else:
                a("s_waitcnt lgkmcnt(0)")
                for r in range(0, 16, 2):
                    a(f"v_pk_fma_f32 {vr(B1r+r,2)}, {vr(CSr+r,2)}, {vr(vMr,2)}, {vr(B1r+r,2)}")
                for r in range(0, 16, 2):
                    a(f"v_pk_fma_f32 {vr(A+r,2)}, {vr(A+r,2)}, {vr(vRs,2)}, {vr(B1r+r,2)}")
                for r in range(0, 16, 2):
                    a(f"v_pk_mul_f32 {vr(CSr+r,2)}, {vr(A+r,2)}, {vr(A+r,2)}")
                for r in range(0, 16, 2):
                    a(f"v_pk_fma_f32 {vr(CSr+r,2)}, {vr(CSr+r,2)}, {vr(K2,2)}, {vr(K1,2)}")
                for r in range(0, 16, 2):
                    a(f"v_pk_mul_f32 {vr(CSr+r,2)}, {vr(CSr+r,2)}, {vr(A+r,2)}")
                for r in range(16):
                    a(f"v_exp_f32 v{CSr+r}, v{CSr+r}")
                for r in range(0, 16, 2):
                    a(f"v_pk_add_f32 {vr(CSr+r,2)}, {vr(CSr+r,2)}, {vr(ONE,2)}")
                for r in range(16):
                    a(f"v_rcp_f32 v{CSr+r}, v{CSr+r}")
                for r in range(0, 16, 2):
                    a(f"v_pk_mul_f32 {vr(A+r,2)}, {vr(A+r,2)}, {vr(CSr+r,2)}")
                for p in range(8):
                    a(f"v_cvt_pk_bf16_f32 v{pk+p}, v{A+2*p}, v{A+2*p+1}")
                a("s_nop 1")
                for pr in range(2):
                    a(f"v_permlane32_swap_b32 v{pk+4*pr}, v{pk+4*pr+2}")
                    a(f"v_permlane32_swap_b32 v{pk+4*pr+1}, v{pk+4*pr+3}")
                a(f"s_lshl_b32 s48, s{g.sT[t]}, 11")
                a("s_add_u32 s48, s48, s49")
                for pr in range(2):
                    a(f"buffer_store_dwordx4 {vr(pk+4*pr,4)}, v{t5}, s[{g.sWS}:{g.sWS+3}], s48 offen offset:{1024*pr} {STP}")
    if g.stamps:
        a("s_memtime s[62:63]\ns_memrealtime s[70:71]\ns_waitcnt lgkmcnt(0)")
        a("s_sub_u32 s62, s62, s60\ns_sub_u32 s70, s70, s68\ns_sub_u32 s64, s64, s60\ns_sub_u32 s66, s66, s60")
        if g.stamps == "abs": a("s_add_u32 s64, s70, s68\nv_mov_b32 v8, s68\nv_mov_b32 v9, s64\nv_mov_b32 v10, s62\nv_mov_b32 v11, s62")
        else: a(f"v_mov_b32 v8, s70\nv_mov_b32 v9, s64\nv_mov_b32 v10, s66\nv_mov_b32 v11, s62")
        a(f"s_lshl_b32 s26, s2, 3\ns_add_u32 s26, s26, s{sWave}\ns_lshl_b32 s26, s26, 4\ns_add_u32 s26, s26, {24<<20}")
        a("v_mov_b32 v12, 0\ns_mov_b64 exec, 1")
        a(f"buffer_store_dwordx4 v[8:11], v12, s[{g.sWS}:{g.sWS+3}], s26 offen")
    a("s_endpgm")
```

```python
from genlib import *
import struct, os
FEXP = os.environ.get('FEXP','')
def f2u(x): return struct.unpack("<I", struct.pack("<f", x))[0]

KB = 5120

def ksplit_setup(a, R):
    vLane, t0, t1, t2, t3 = R["vLane"], *R["t"][:4]
    for n in range(5):
        a(f"v_add_u32 v{t0}, {64*n}, v{vLane}")
        a(f"v_mul_u32_u24 v{t1}, 3277, v{t0}")
        a(f"v_lshrrev_b32 v{t1}, 16, v{t1}")
        a(f"v_mul_u32_u24 v{t2}, 20, v{t1}")
        a(f"v_sub_u32 v{t2}, v{t0}, v{t2}")
        a(f"v_mul_u32_u24 v{t1}, 1280, v{t1}")
        a(f"v_lshl_add_u32 v{R['vWd'][n]}, v{t2}, 4, v{t1}")
        if 0 < n < 4:
            a(f"v_subrev_u32 v{R['vWd'][n]}, {1024*n}, v{R['vWd'][n]}")
    a(f"v_bfe_u32 v{t0}, v{vLane}, 2, 2")
    a(f"v_and_b32 v{t1}, 3, v{vLane}")
    a(f"v_bfe_u32 v{t2}, v{vLane}, 4, 1")
    a(f"v_lshrrev_b32 v{t3}, 5, v{vLane}")
    a(f"v_lshl_add_u32 v{t3}, v{t3}, 3, v{t0}")
    a(f"v_mul_u32_u24 v{t3}, 320, v{t3}")
    a(f"v_lshl_add_u32 v{t3}, v{t2}, 5, v{t3}")
    a(f"v_lshl_add_u32 v{t3}, v{t1}, 3, v{t3}")
    a(f"v_add_u32 v{R['vWa']}, s{R['sLds']}, v{t3}")
    a(f"v_lshlrev_b32 v{R['vAo']}, 4, v{vLane}")

def ksplit_gemm(a, R, nks, sA, sAoff, sW, sWoff, RING, prio=False, pre=None, mid=None):
    ACC, AF, WF = R["ACC"], R["AF"], R["WF"]
    def issue(ks):
        b = ks % RING
        a(f"s_add_u32 m0, s{R['sLds']}, {b*KB}")
        if "samea" in FEXP: a(f"buffer_load_dwordx4 {vr(AF[b],4)}, v{R['vAo']}, s[{sA}:{sA+3}], 0 offen")
        else: a(f"buffer_load_dwordx4 {vr(AF[b],4)}, v{R['vAo']}, s[{sA}:{sA+3}], s{sAoff} offen")
        for n in range(4):
            if "nodma" in FEXP: a("s_nop 0"); continue
            if "plain" in FEXP: a(f"buffer_load_dwordx4 {vr(WF[n],4)}, v{R['vWd'][n]}, s[{sW}:{sW+3}], s{sWoff} offen offset:{1024*n}"); continue
            a(f"buffer_load_dwordx4 v{R['vWd'][n]}, s[{sW}:{sW+3}], s{sWoff} offen offset:{1024*n} lds")
        a(f"s_add_u32 m0, s{R['sLds']}, {b*KB + 4096}")
        a(f"s_add_u32 s{sAoff}, s{sAoff}, 1024")
        if "nodma" in FEXP: a("s_nop 0")
        elif "plain" in FEXP: a(f"buffer_load_dwordx4 {vr(WF[4],4)}, v{R['vWd'][4]}, s[{sW}:{sW+3}], s{sWoff} offen")
        else: a(f"buffer_load_dwordx4 v{R['vWd'][4]}, s[{sW}:{sW+3}], s{sWoff} offen lds")
        a(f"s_add_u32 s{sWoff}, s{sWoff}, {16*1280}")
    def reads(ks):
        b = ks % RING
        for t in range(5):
            for rd in range(2):
                a(f"ds_read_b64_tr_b16 {vr(WF[t]+2*rd,2)}, v{R['vWa']} offset:{b*KB + rd*1280 + t*64}")
    for ks in range(min(RING-1, nks)):
        issue(ks)
    if pre: pre()
    extra = 0
    for ks in range(nks):
        nxt = ks + RING - 1
        if nxt < nks:
            issue(nxt)
        if mid and ks == mid[0]:
            assert nxt >= nks
            mid[1](); extra = mid[2]
        infl = min(nks - 1 - ks, RING - 1)
        a(f"s_waitcnt vmcnt({(1 if 'nodma' in FEXP else 6)*infl + extra})")
        if "nocomp" in FEXP: continue
        if prio: a("s_setprio 3")
        reads(ks)
        for t in range(5):
            if t in (0, 2): a(f"s_waitcnt lgkmcnt({6 if t == 0 else 0})")
            a(f"v_mfma_f32_32x32x16_bf16 {vr(ACC[t],16)}, {vr(WF[t],4)}, {vr(AF[ks%RING],4)}, {vr(ACC[t],16)}")
        if prio: a("s_setprio 0")

def ksplit_reduce(a, R, dst):
    ACC = R["ACC"]; t0, t1 = R["t"][:2]
    a("s_nop 15")
    a("s_nop 3")
    a("s_barrier")
    a(f"s_mul_i32 s48, s{R['sWave']}, 5120")
    a(f"v_add_u32 v{t0}, s48, v{R['vAo']}")
    a(f"v_add_u32 v{t1}, 40960, v{t0}")
    for g in range(4):
        for t in range(5):
            a(f"ds_write_b128 v{t0 if g < 2 else t1}, {vr(ACC[t]+4*g,4)} offset:{(g%2)*20480 + t*1024}")
    a("s_waitcnt lgkmcnt(0)")
    a("s_barrier")
    a(f"s_mul_i32 s48, s{R['sWave']}, 20480")
    a(f"v_add_u32 v{t0}, s48, v{R['vAo']}")
    for w in range(4):
        for t in range(5):
            a(f"ds_read_b128 {vr(ACC[t]+4*w,4)}, v{t0} offset:{w*5120 + t*1024}")
    a("s_waitcnt lgkmcnt(0)")
    for t in range(5):
        for i in range(4):
            a(f"v_add_f32 v{ACC[t]+i}, v{ACC[t]+i}, v{ACC[t]+4+i}")
            a(f"v_add_f32 v{ACC[t]+8+i}, v{ACC[t]+8+i}, v{ACC[t]+12+i}")
            a(f"v_add_f32 v{dst[t]+i}, v{ACC[t]+i}, v{ACC[t]+8+i}")
    a("s_barrier")

def gen_p3(a, name="p3_kernel", stamps=False, with_ffn2=True, RING=6):
    kernel_header(a, name)
    sX, sWo, sW2, sWS, sOut, sB2 = 4, 8, 12, 16, 20, 24
    sWave, sTt, sCb, sLds, sAoff, sWoff = 28, 29, 30, 31, 32, 33
    R = dict(vLane=1, t=[2, 3, 4, 5, 6, 7], vWd=[8, 9, 10, 11, 12], vWa=13, vAo=14, sLds=sLds, sWave=sWave,
             AF=[188 + 4*i for i in range(RING)], WF=[28 + 4*t for t in range(5)], ACC=[48 + 16*t for t in range(5)])
    G = [128 + 4*t for t in range(5)]
    Sv = [148 + 4*t for t in range(5)]
    XV = [168 + 2*t for t in range(5)]
    BV = [178 + 2*t for t in range(5)]
    NV = 188 + 4*RING
    vLane = 1; t0, t1, t2, t3 = R["t"][:4]
    a("s_cmp_ge_u32 s2, 256")
    a(f"s_cbranch_scc1 {name}_end")
    a(f"s_load_dwordx2 s[36:37], s[0:1], {KA['x']}")
    a(f"s_load_dwordx2 s[38:39], s[0:1], {KA['wo']}")
    a(f"s_load_dwordx4 s[40:43], s[0:1], {KA['w2']}")
    a(f"s_load_dwordx2 s[44:45], s[0:1], {KA['out']}")
    a(f"s_load_dwordx2 s[46:47], s[0:1], {KA['ws']}")
    if stamps: a("s_memtime s[60:61]\ns_memrealtime s[68:69]")
    a("v_lshrrev_b32 v2, 6, v0")
    a(f"v_and_b32 v{vLane}, 63, v0")
    a("s_and_b32 s48, s2, 7")
    a(f"v_readfirstlane_b32 s{sWave}, v2")
    a("s_lshr_b32 s49, s2, 3")
    a(f"s_and_b32 s{sCb}, s48, 3")
    a("s_lshr_b32 s48, s48, 2")
    a("s_lshl_b32 s48, s48, 5")
    a(f"s_add_u32 s{sTt}, s48, s49")
    a(f"s_mul_i32 s{sLds}, s{sWave}, {RING*KB}")
    ksplit_setup(a, R)
    for t in range(5):
        for r in range(16):
            a(f"v_mov_b32 v{R['ACC'][t]+r}, 0")
    a("s_waitcnt lgkmcnt(0)")
    make_srd(a, sX, 36, S*D*2)
    make_srd(a, sWo, 38, D*D*2)
    make_srd(a, sW2, 40, F*D*2)
    make_srd(a, sB2, 42, D*2)
    make_srd(a, sOut, 44, S*D*2)
    make_srd(a, sWS, 46, WS_BYTES)
    vE = 15
    a(f"v_and_b32 v{t0}, 31, v{vLane}")
    a(f"v_lshrrev_b32 v{t1}, 5, v{vLane}")
    a(f"v_mul_u32_u24 v{t0}, 1280, v{t0}")
    a(f"v_lshl_add_u32 v{vE}, v{t1}, 3, v{t0}")
    a(f"s_mul_i32 s50, s{sCb}, 320")
    a(f"s_lshl_b32 s51, s{sWave}, 4")
    a("s_add_u32 s50, s50, s51")
    a(f"s_mul_i32 s51, s{sTt}, 40960")
    a("s_add_u32 s51, s51, s50")
    a(f"v_lshlrev_b32 v{t1}, 3, v{t1}")
    for t in range(5):
        a(f"buffer_load_dwordx2 {vr(XV[t],2)}, v{vE}, s[{sX}:{sX+3}], s51 offen offset:{64*t}")
        if with_ffn2:
            a(f"buffer_load_dwordx2 {vr(BV[t],2)}, v{t1}, s[{sB2}:{sB2+3}], s50 offen offset:{64*t}")
    if with_ffn2:
        a(f"s_mul_i32 s{sAoff}, s{sTt}, {96*1024}")
        a(f"s_mul_i32 s48, s{sWave}, {24*1024}")
        a(f"s_add_u32 s{sAoff}, s{sAoff}, s48")
        a(f"s_add_u32 s{sAoff}, s{sAoff}, {OFF_H}")
        a(f"s_mul_i32 s{sWoff}, s{sWave}, {384*1280}")
        a(f"s_mul_i32 s48, s{sCb}, 320")
        a(f"s_add_u32 s{sWoff}, s{sWoff}, s48")
        ksplit_gemm(a, R, 24, sWS, sAoff, sW2, sWoff, RING)
        ksplit_reduce(a, R, G)
        for t in range(5):
            for i in range(4):
                src = BV[t] + i//2
                if i % 2 == 0: a(f"v_lshlrev_b32 v{t0}, 16, v{src}")
                else: a(f"v_and_b32 v{t0}, 0xffff0000, v{src}")
                a(f"v_add_f32 v{G[t]+i}, v{G[t]+i}, v{t0}")
                a(f"v_mul_f32 v{t1}, {f2u(-1.4426950408889634):#x}, v{G[t]+i}")
                a(f"v_exp_f32 v{t1}, v{t1}")
                a("s_nop 0")
                a(f"v_add_f32 v{t1}, 1.0, v{t1}")
                a(f"v_rcp_f32 v{t1}, v{t1}")
                a("s_nop 0")
                a(f"v_mul_f32 v{G[t]+i}, v{G[t]+i}, v{t1}")
        for t in range(5):
            for r in range(16):
                a(f"v_mov_b32 v{R['ACC'][t]+r}, 0")
    else:
        a(f"s_lshl_b32 s52, s{sTt}, 2")
        a(f"s_add_u32 s52, s52, s{sCb}")
        a("s_lshl_b32 s52, s52, 2")
        a(f"s_add_u32 s52, s52, s{sWave}")
        a("s_mul_i32 s52, s52, 2560")
        a(f"s_add_u32 s52, s52, {OFF_G}")
        a(f"v_lshlrev_b32 v{t2}, 3, v{vLane}")
        for t in range(5):
            a(f"buffer_load_dwordx2 {vr(BV[t],2)}, v{t2}, s[{sWS}:{sWS+3}], s52 offen offset:{512*t}")
    a(f"s_mul_i32 s{sAoff}, s{sTt}, {40*1024}")
    a(f"s_mul_i32 s48, s{sWave}, {10*1024}")
    a(f"s_add_u32 s{sAoff}, s{sAoff}, s48")
    a(f"s_add_u32 s{sAoff}, s{sAoff}, {OFF_O}")
    a(f"s_mul_i32 s{sWoff}, s{sWave}, {160*1280}")
    a(f"s_mul_i32 s48, s{sCb}, 320")
    a(f"s_add_u32 s{sWoff}, s{sWoff}, s48")
    ksplit_gemm(a, R, 10, sWS, sAoff, sWo, sWoff, RING)
    ksplit_reduce(a, R, Sv)
    for t in range(5):
        for i in range(4):
            src = XV[t] + i//2
            if i % 2 == 0: a(f"v_lshlrev_b32 v{t0}, 16, v{src}")
            else: a(f"v_and_b32 v{t0}, 0xffff0000, v{src}")
            if not with_ffn2:
                src = BV[t] + i//2
                if i % 2 == 0: a(f"v_lshlrev_b32 v{G[t]+i}, 16, v{src}")
                else: a(f"v_and_b32 v{G[t]+i}, 0xffff0000, v{src}")
            a(f"v_fma_f32 v{Sv[t]+i}, v{Sv[t]+i}, v{G[t]+i}, v{t0}")
        a(f"v_cvt_pk_bf16_f32 v{XV[t]}, v{Sv[t]}, v{Sv[t]+1}")
        a(f"v_cvt_pk_bf16_f32 v{XV[t]+1}, v{Sv[t]+2}, v{Sv[t]+3}")
        a(f"buffer_store_dwordx2 {vr(XV[t],2)}, v{vE}, s[{sOut}:{sOut+3}], s51 offen offset:{64*t}")
    if stamps:
        a("s_memtime s[62:63]\ns_memrealtime s[70:71]\ns_waitcnt lgkmcnt(0)")
        a("s_sub_u32 s62, s62, s60\ns_sub_u32 s70, s70, s68")
        if stamps == "abs": a("s_add_u32 s64, s70, s68\nv_mov_b32 v8, s68\nv_mov_b32 v9, s64\nv_mov_b32 v10, s62\nv_mov_b32 v11, s62")
        else: a(f"v_mov_b32 v8, s70\nv_mov_b32 v9, s62\nv_mov_b32 v10, s62\nv_mov_b32 v11, s62")
        a(f"s_lshl_b32 s26, s2, 2\ns_add_u32 s26, s26, s{sWave}\ns_lshl_b32 s26, s26, 4\ns_add_u32 s26, s26, {(24<<20) + (131072 if stamps == 'abs' else 0)}")
        a("v_mov_b32 v12, 0\ns_mov_b64 exec, 1")
        a(f"buffer_store_dwordx4 v[8:11], v12, s[{sWS}:{sWS+3}], s26 offen")
    a.label(f"{name}_end")
    a("s_endpgm")
    return NV, max(81920, 4*RING*KB)


def gen_ffn2_waves(a, name, RING=6):
    LCNT = 4*RING*KB
    sW2, sWS, sB2 = 12, 16, 24
    sWave, sTt, sCb, sLds, sAoff, sWoff = 28, 29, 30, 31, 32, 33
    R = dict(vLane=1, t=[2, 3, 4, 5, 6, 7], vWd=[8, 9, 10, 11, 12], vWa=13, vAo=14, sLds=sLds, sWave=sWave,
             AF=[128 + 4*i for i in range(RING)], WF=[28 + 4*t for t in range(5)], ACC=[48 + 16*t for t in range(5)])
    BV = [16 + 2*t for t in range(5)]
    vLane = 1; t0, t1, t2, t3 = R["t"][:4]
    ACC = R["ACC"]
    a(f"s_load_dwordx4 s[40:43], s[0:1], {KA['w2']}")
    a(f"s_load_dwordx2 s[46:47], s[0:1], {KA['ws']}")
    a(f"v_and_b32 v{vLane}, 63, v0")
    a("s_and_b32 s48, s2, 7")
    a(f"s_sub_u32 s{sWave}, s10, 8")
    a("s_lshr_b32 s49, s2, 3")
    a(f"s_and_b32 s{sCb}, s48, 3")
    a("s_lshr_b32 s48, s48, 2")
    a("s_lshl_b32 s48, s48, 5")
    a(f"s_add_u32 s{sTt}, s48, s49")
    a(f"s_mul_i32 s{sLds}, s{sWave}, {RING*KB}")
    a(f"v_mov_b32 v{t0}, {LCNT}")
    a(f"v_mov_b32 v{t1}, 0")
    a(f"ds_write_b32 v{t0}, v{t1}")
    a("s_waitcnt lgkmcnt(0)")
    a("s_barrier")
    ksplit_setup(a, R)
    make_srd(a, sW2, 40, F*D*2)
    make_srd(a, sB2, 42, D*2)
    make_srd(a, sWS, 46, WS_BYTES)
    a(f"s_mul_i32 s50, s{sCb}, 320")
    a(f"s_lshl_b32 s51, s{sWave}, 4")
    a("s_add_u32 s50, s50, s51")
    a(f"v_lshrrev_b32 v{t1}, 5, v{vLane}")
    a(f"v_lshlrev_b32 v{t1}, 3, v{t1}")
    for t in range(5):
        a(f"buffer_load_dwordx2 {vr(BV[t],2)}, v{t1}, s[{sB2}:{sB2+3}], s50 offen offset:{64*t}")
    a(f"s_mul_i32 s{sAoff}, s{sTt}, {96*1024}")
    a(f"s_mul_i32 s48, s{sWave}, {24*1024}")
    a(f"s_add_u32 s{sAoff}, s{sAoff}, s48")
    a(f"s_add_u32 s{sAoff}, s{sAoff}, {OFF_H}")
    a(f"s_mul_i32 s{sWoff}, s{sWave}, {384*1280}")
    a(f"s_mul_i32 s48, s{sCb}, 320")
    a(f"s_add_u32 s{sWoff}, s{sWoff}, s48")
    for t in range(5):
        for r in range(16):
            a(f"v_mov_b32 v{ACC[t]+r}, 0")
    ksplit_gemm(a, R, 24, sWS, sAoff, sW2, sWoff, RING, prio=("prio3" in FEXP))
    if "prio3" in FEXP: a("s_setprio 3")
    a("s_nop 15")
    a("s_nop 3")
    a(f"v_add_u32 v{t0}, s{sLds}, v{R['vAo']}")
    for w in range(4):
        a(f"s_cmp_lg_u32 s{sWave}, {w}")
        a(f"s_cbranch_scc1 {name}_f2w{w}")
        for g in range(4):
            if g == w: continue
            for t in range(5):
                a(f"ds_write_b128 v{t0}, {vr(ACC[t]+4*g,4)} offset:{(((g-w)&3)-1)*5120 + t*1024}")
        if w:
            a("s_waitcnt lgkmcnt(0)")
            for t in range(5):
                for i in range(4):
                    a(f"v_mov_b32 v{ACC[t]+i}, v{ACC[t]+4*w+i}")
        a.label(f"{name}_f2w{w}")
    a(f"v_mov_b32 v{t2}, {LCNT}")
    a(f"v_mov_b32 v{t3}, 1")
    a("s_waitcnt lgkmcnt(0)")
    a("s_mov_b64 exec, 1")
    a(f"ds_add_u32 v{t2}, v{t3}")
    a("s_mov_b64 exec, -1")
    a.label(f"{name}_f2spin")
    a(f"ds_read_b32 v{t3}, v{t2}")
    a("s_waitcnt lgkmcnt(0)")
    a(f"v_readfirstlane_b32 s48, v{t3}")
    a("s_cmp_ge_u32 s48, 4")
    a(f"s_cbranch_scc1 {name}_f2go")
    a("s_sleep 2")
    a(f"s_branch {name}_f2spin")
    a.label(f"{name}_f2go")
    for d in range(1, 4):
        a(f"s_sub_u32 s48, s{sWave}, {d}")
        a("s_and_b32 s48, s48, 3")
        a(f"s_mul_i32 s48, s48, {RING*KB}")
        a(f"v_add_u32 v{t0}, s48, v{R['vAo']}")
        for t in range(5):
            a(f"ds_read_b128 {vr(ACC[t]+4*d,4)}, v{t0} offset:{(d-1)*5120 + t*1024}")
    a("s_waitcnt lgkmcnt(0)")
    a(f"s_mul_i32 s52, s{sTt}, 40960")
    a("s_add_u32 s52, s52, s50")
    a(f"s_add_u32 s52, s52, {OFF_G}")
    a(f"v_and_b32 v{t2}, 31, v{vLane}")
    a(f"v_lshrrev_b32 v{t3}, 5, v{vLane}")
    a(f"v_mul_u32_u24 v{t2}, 1280, v{t2}")
    a(f"v_lshl_add_u32 v{t2}, v{t3}, 3, v{t2}")
    for t in range(5):
        for i in range(4):
            a(f"v_add_f32 v{ACC[t]+i}, v{ACC[t]+i}, v{ACC[t]+4+i}")
            a(f"v_add_f32 v{ACC[t]+8+i}, v{ACC[t]+8+i}, v{ACC[t]+12+i}")
            src = BV[t] + i//2
            if i % 2 == 0: a(f"v_lshlrev_b32 v{ACC[t]+4+i}, 16, v{src}")
            else: a(f"v_and_b32 v{ACC[t]+4+i}, 0xffff0000, v{src}")
            a(f"v_add_f32 v{ACC[t]+i}, v{ACC[t]+i}, v{ACC[t]+8+i}")
            a(f"v_add_f32 v{ACC[t]+i}, v{ACC[t]+i}, v{ACC[t]+4+i}")
            a(f"v_mul_f32 v{ACC[t]+4+i}, {f2u(-1.4426950408889634):#x}, v{ACC[t]+i}")
        for i in range(4): a(f"v_exp_f32 v{ACC[t]+4+i}, v{ACC[t]+4+i}")
        for i in range(4): a(f"v_add_f32 v{ACC[t]+4+i}, 1.0, v{ACC[t]+4+i}")
        for i in range(4): a(f"v_rcp_f32 v{ACC[t]+4+i}, v{ACC[t]+4+i}")
        for i in range(4): a(f"v_mul_f32 v{ACC[t]+i}, v{ACC[t]+i}, v{ACC[t]+4+i}")
        a(f"v_cvt_pk_bf16_f32 v{ACC[t]+8}, v{ACC[t]}, v{ACC[t]+1}")
        a(f"v_cvt_pk_bf16_f32 v{ACC[t]+9}, v{ACC[t]+2}, v{ACC[t]+3}")
        a(f"buffer_store_dwordx2 {vr(ACC[t]+8,2)}, v{t2}, s[{sWS}:{sWS+3}], s52 offen offset:{64*t} sc1")
    a("s_endpgm")
    return LCNT + 64


def gen_p3b(a, name="p3_kernel", stamps=False):
    RING = 8
    kernel_header(a, name)
    sX, sWo, sWS, sOut = 4, 8, 16, 20
    sWave, sTt, sCb, sLds, sAoff, sWoff = 28, 29, 30, 31, 32, 33
    R = dict(vLane=1, t=[2, 3, 4, 5, 6, 7], vWd=[8, 9, 10, 11, 12], vWa=13, vAo=14, sLds=sLds, sWave=sWave,
             AF=[128 + 4*i for i in range(RING)], WF=[28 + 4*t for t in range(5)], ACC=[48 + 16*t for t in range(5)])
    XV, GV = 160, 170
    NV = 180
    vLane = 1; t0, t1, t2, t3 = R["t"][:4]
    vE = 15
    a("s_cmp_ge_u32 s2, 256")
    a(f"s_cbranch_scc1 {name}_end")
    a(f"s_load_dwordx2 s[36:37], s[0:1], {KA['x']}")
    a(f"s_load_dwordx2 s[38:39], s[0:1], {KA['wo']}")
    a(f"s_load_dwordx2 s[44:45], s[0:1], {KA['out']}")
    a(f"s_load_dwordx2 s[46:47], s[0:1], {KA['ws']}")
    if stamps: a("s_memtime s[60:61]\ns_memrealtime s[68:69]")
    a("v_lshrrev_b32 v2, 6, v0")
    a(f"v_and_b32 v{vLane}, 63, v0")
    a("s_and_b32 s48, s2, 7")
    a(f"v_readfirstlane_b32 s{sWave}, v2")
    a("s_lshr_b32 s49, s2, 3")
    a(f"s_and_b32 s{sCb}, s48, 3")
    a("s_lshr_b32 s48, s48, 2")
    a("s_lshl_b32 s48, s48, 5")
    a(f"s_add_u32 s{sTt}, s48, s49")
    a(f"s_mul_i32 s{sLds}, s{sWave}, {RING*KB}")
    ksplit_setup(a, R)
    a(f"s_mul_i32 s{sAoff}, s{sTt}, {40*1024}")
    a(f"s_mul_i32 s48, s{sWave}, {10*1024}")
    a(f"s_add_u32 s{sAoff}, s{sAoff}, s48")
    a(f"s_add_u32 s{sAoff}, s{sAoff}, {OFF_O}")
    a(f"s_mul_i32 s{sWoff}, s{sWave}, {160*1280}")
    a(f"s_mul_i32 s50, s{sCb}, 320")
    a(f"s_add_u32 s{sWoff}, s{sWoff}, s50")
    a(f"v_lshrrev_b32 v{t0}, 3, v0")
    a(f"v_and_b32 v{t1}, 7, v0")
    a(f"v_mul_u32_u24 v{vE}, 1280, v{t0}")
    a(f"v_mad_u32_u24 v{vE}, v{t1}, 40, v{vE}")
    a(f"v_mul_u32_u24 v16, 656, v{t0}")
    a(f"v_mad_u32_u24 v16, v{t1}, 64, v16")
    a(f"v_mad_u32_u24 v16, v{t1}, 16, v16")
    a(f"s_mul_i32 s51, s{sTt}, 40960")
    a("s_add_u32 s51, s51, s50")
    a(f"s_add_u32 s52, s51, {OFF_G}")
    a("s_waitcnt lgkmcnt(0)")
    make_srd(a, sWo, 38, D*D*2)
    make_srd(a, sWS, 46, WS_BYTES)
    make_srd(a, sX, 36, S*D*2)
    make_srd(a, sOut, 44, S*D*2)
    def pre():
        if stamps is True: a("s_memtime s[64:65]\ns_waitcnt lgkmcnt(0)")
        for t in range(5):
            for r in range(16):
                a(f"v_mov_b32 v{R['ACC'][t]+r}, 0")
    def mid():
        for base, srd, so in ((XV, sX, 51), (GV, sWS, 52)):
            a(f"buffer_load_dwordx4 {vr(base,4)}, v{vE}, s[{srd}:{srd+3}], s{so} offen")
            a(f"buffer_load_dwordx4 {vr(base+4,4)}, v{vE}, s[{srd}:{srd+3}], s{so} offen offset:16")
            a(f"buffer_load_dwordx2 {vr(base+8,2)}, v{vE}, s[{srd}:{srd+3}], s{so} offen offset:32")
    ksplit_gemm(a, R, 10, sWS, sAoff, sWo, sWoff, RING, pre=pre, mid=(3, mid, 6))
    if stamps is True: a("s_memtime s[66:67]\ns_waitcnt lgkmcnt(0)")
    ACC = R["ACC"]
    a(f"v_and_b32 v{t0}, 31, v{vLane}")
    a(f"v_lshrrev_b32 v{t1}, 5, v{vLane}")
    a(f"v_mul_u32_u24 v{t0}, 656, v{t0}")
    a(f"v_lshl_add_u32 v{t0}, v{t1}, 4, v{t0}")
    a(f"v_add_u32 v{t0}, s{sLds}, v{t0}")
    a("s_nop 10")
    for t in range(5):
        for g in range(4):
            a(f"ds_write_b128 v{t0}, {vr(ACC[t]+4*g,4)} offset:{128*t + 32*g}")
    a(f"v_add_u32 v17, {2*RING*KB}, v16")
    a("s_waitcnt lgkmcnt(0)")
    a("s_barrier")
    P = 48
    for w in range(4):
        for q in range(5):
            a(f"ds_read_b128 {vr(P+20*w+4*q,4)}, v{16 if w < 2 else 17} offset:{(w%2)*RING*KB + 16*q}")
    XU, GU = 128, 28
    a("s_waitcnt vmcnt(0)")
    for i in range(10):
        a(f"v_lshlrev_b32 v{XU+2*i}, 16, v{XV+i}")
        a(f"v_and_b32 v{XU+2*i+1}, 0xffff0000, v{XV+i}")
        a(f"v_lshlrev_b32 v{GU+2*i}, 16, v{GV+i}")
        a(f"v_and_b32 v{GU+2*i+1}, 0xffff0000, v{GV+i}")
    a("s_waitcnt lgkmcnt(0)")
    for i in range(0, 20, 2):
        a(f"v_pk_add_f32 {vr(P+i,2)}, {vr(P+i,2)}, {vr(P+20+i,2)}")
        a(f"v_pk_add_f32 {vr(P+40+i,2)}, {vr(P+40+i,2)}, {vr(P+60+i,2)}")
    for i in range(0, 20, 2):
        a(f"v_pk_add_f32 {vr(P+i,2)}, {vr(P+i,2)}, {vr(P+40+i,2)}")
    for i in range(0, 20, 2):
        a(f"v_pk_fma_f32 {vr(P+i,2)}, {vr(P+i,2)}, {vr(GU+i,2)}, {vr(XU+i,2)}")
    for i in range(10):
        a(f"v_cvt_pk_bf16_f32 v{XV+i}, v{P+2*i}, v{P+2*i+1}")
    a(f"buffer_store_dwordx4 {vr(XV,4)}, v{vE}, s[{sOut}:{sOut+3}], s51 offen")
    a(f"buffer_store_dwordx4 {vr(XV+4,4)}, v{vE}, s[{sOut}:{sOut+3}], s51 offen offset:16")
    a(f"buffer_store_dwordx2 {vr(XV+8,2)}, v{vE}, s[{sOut}:{sOut+3}], s51 offen offset:32")
    if stamps:
        a("s_memtime s[62:63]\ns_memrealtime s[70:71]\ns_waitcnt lgkmcnt(0)")
        a("s_sub_u32 s62, s62, s60\ns_sub_u32 s70, s70, s68")
        if stamps == "abs": a("s_add_u32 s64, s70, s68\nv_mov_b32 v8, s68\nv_mov_b32 v9, s64\nv_mov_b32 v10, s62\nv_mov_b32 v11, s62")
        else: a(f"s_sub_u32 s64, s64, s60\ns_sub_u32 s66, s66, s60\nv_mov_b32 v8, s70\nv_mov_b32 v9, s64\nv_mov_b32 v10, s66\nv_mov_b32 v11, s62")
        a(f"s_lshl_b32 s26, s2, 2\ns_add_u32 s26, s26, s{sWave}\ns_lshl_b32 s26, s26, 4\ns_add_u32 s26, s26, {(24<<20) + (131072 if stamps == 'abs' else 0)}")
        a("v_mov_b32 v12, 0\ns_mov_b64 exec, 1")
        a(f"buffer_store_dwordx4 v[8:11], v12, s[{sWS}:{sWS+3}], s26 offen")
    a.label(f"{name}_end")
    a("s_endpgm")
    return NV, 4*RING*KB
```

```python
import sys, os
from genlib import *
from gen_attn import gen_attn
from gen_p1 import gen_p1
from gen_p3 import gen_p3, gen_p3b

STAMPS = (sys.argv[3] if sys.argv[3] == "abs" else True) if len(sys.argv) > 3 else False
HDR = open("recurrent_scan__softmax_full_mha__mixer_channel_mlp__prompt.s.ref").read().split("; Override launch")[0]

def build(which):
    a = Asm()
    launches = []; descs = []
    body = Asm()
    for k in which:
        if k == "attnf":
            nv, lds = gen_attn(body, "attn_kernel", stamps=STAMPS, ffn2=True, ring=int(os.environ.get("RING","3")))
            launches.append(f"; @launch kernel=attn_kernel grid=(256,1,1) block=(768,1,1) lds={lds}")
            descs.append(kernel_desc("attn_kernel", nv))
        if k == "p3o":
            nv, lds = gen_p3b(body, "p3_kernel", stamps=STAMPS)
            launches.append(f"; @launch kernel=p3_kernel grid=(256,1,1) block=(256,1,1) lds={lds}")
            descs.append(kernel_desc("p3_kernel", nv))
        if k == "p3":
            nv, lds = gen_p3(body, "p3_kernel", stamps=STAMPS)
            launches.append(f"; @launch kernel=p3_kernel grid=(256,1,1) block=(256,1,1) lds={lds}")
            descs.append(kernel_desc("p3_kernel", nv))
        if k == "p1":
            nv, lds = gen_p1(body, "p1_kernel", stamps=STAMPS)
            launches.append(f"; @launch kernel=p1_kernel grid=(256,1,1) block=(512,1,1) lds={lds}")
            descs.append(kernel_desc("p1_kernel", nv))
        if k == "attn":
            nv, lds = gen_attn(body, "attn_kernel", stamps=STAMPS)
            launches.append(f"; @launch kernel=attn_kernel grid=(256,1,1) block=(512,1,1) lds={lds}")
            descs.append(kernel_desc("attn_kernel", nv))
    out = HDR + "\n".join(launches) + "\n" + '.amdgcn_target "amdgcn-amd-amdhsa--gfx950"\n.text\n' + body.text()
    out += '.section .rodata,"a"\n' + "".join(".p2align 6\n" + d for d in descs)
    return out

if __name__ == "__main__":
    which = sys.argv[2].split(",")
    open(sys.argv[1], "w").write(build(which))
```
